```python
import torch

def _softmax(x, axis=-1):
    return torch.softmax(x, dim=axis)
def _gelu(x):
    return torch.nn.functional.gelu(x, approximate="tanh")
def _silu(x):
    return torch.nn.functional.silu(x)
def _sigmoid(x):
    return torch.sigmoid(x)
def _layernorm(x, axis=-1, eps=1e-5):
    m = x.mean(dim=axis, keepdim=True)
    v = x.var(dim=axis, keepdim=True, unbiased=False)
    return (x - m) / torch.sqrt(v + eps)
def _scatter_add(tgt, idx, src, axis=0):
    return tgt.clone().index_add_(axis, idx, src)
def _segment_sum(src, seg, n):
    out = torch.zeros((n,) + src.shape[1:], dtype=src.dtype)
    return out.index_add_(0, seg, src)
def _pad(x, pw):
    flat = tuple(v for pair in reversed(pw) for v in pair)
    return torch.nn.functional.pad(x, flat)

kernel_name = 'sequential_preLN__sliding_block_cached__dense_activation_squared_relu__decode'

def setup_inputs():

    _w = (lambda a: (lambda t: t.to(torch.bfloat16) if t.is_floating_point() else t)(torch.as_tensor(a)))
    def _A_setup():
        B, Sq, D = 1, 1, 512
        Hq, Hkv, Sk, Dh = 32, 32, 4096, 128
        assert Hq % Hkv == 0, (Hq, Hkv)
        return {
            "x": _w((lambda *s: torch.randn(*s, dtype=torch.bfloat16) * 0.05)(B, Sq, D)),
            "k_cache": _w((lambda *s: torch.randn(*s, dtype=torch.bfloat16) * 3.2)(B, Hkv, Sk, Dh)),
            "v_cache": _w((lambda *s: torch.randn(*s, dtype=torch.bfloat16) * 0.4)(B, Hkv, Sk, Dh)),
            "wq": _w((lambda *s: torch.randn(*s, dtype=torch.bfloat16) * 3.2)(D, Hq * Dh) * (D ** -0.5)),
            "wo": _w((lambda *s: torch.randn(*s, dtype=torch.bfloat16) * 0.4)(Hq * Dh, D) * ((Hq * Dh) ** -0.5)),
        }
    _A_in = _A_setup()

    def _B_setup():
        B, S, D, F = 1, 1, 512, 1376
        return {
            "x": _w((lambda *s: torch.randn(*s, dtype=torch.bfloat16) * 0.05)(B, S, D)),
            "w1": _w((lambda *s: torch.randn(*s, dtype=torch.bfloat16) * 0.05)(D, F)),
            "b1": _w((lambda *s: torch.randn(*s, dtype=torch.bfloat16) * 0.4)(F)),
            "w2": _w((lambda *s: torch.randn(*s, dtype=torch.bfloat16) * 0.05)(F, D)),
            "b2": _w((lambda *s: torch.randn(*s, dtype=torch.bfloat16) * 1.6)(D)),
        }
    _B_in = _B_setup()

    return {
        "A_x": _A_in["x"],
        "A_k_cache": _A_in["k_cache"],
        "A_v_cache": _A_in["v_cache"],
        "A_wq": _A_in["wq"],
        "A_wo": _A_in["wo"],
        "B_x": _B_in["x"],
        "B_w1": _B_in["w1"],
        "B_b1": _B_in["b1"],
        "B_w2": _B_in["w2"],
        "B_b2": _B_in["b2"],
    }

def reference(A_x, A_k_cache, A_v_cache, A_wq, A_wo, B_x, B_w1, B_b1, B_w2, B_b2):
    def _A_ref(x, k_cache, v_cache, wq, wo):
        B, Sq, D = x.shape
        Hq, Dh = 32, 128
        Hkv, Sk = k_cache.shape[1], k_cache.shape[2]
        W = min(4096, max(256, Sk // 4))
        rep = Hq // Hkv
        q = (lambda x, *d: x.permute(*d))((x @ wq).reshape(B, Sq, Hq, Dh), 0, 2, 1, 3)
        k = (lambda x, n, axis: torch.repeat_interleave(x, n, dim=axis))(k_cache[:, :, Sk - W:, :], rep, axis=1)
        v = (lambda x, n, axis: torch.repeat_interleave(x, n, dim=axis))(v_cache[:, :, Sk - W:, :], rep, axis=1)
        scores = torch.einsum("bhqd,bhkd->bhqk", q, k) * (Dh ** -0.5)
        p = _softmax(scores, axis=-1)
        o = torch.einsum("bhqk,bhkd->bhqd", p, v)
        return (lambda x, *d: x.permute(*d))(o, 0, 2, 1, 3).reshape(B, Sq, Hq * Dh) @ wo

    def _B_ref(x, w1, b1, w2, b2):
        h = torch.einsum("bsd,df->bsf", x, w1) + b1
        zero = torch.zeros_like(h)
        r = torch.where(h > zero, h, zero)
        h = r * r
        out = torch.einsum("bsf,fd->bsd", h, w2) + b2
        return out

    x = A_x
    h = x + _A_ref(_layernorm(x, axis=-1), A_k_cache, A_v_cache, A_wq, A_wo)
    h2 = h + _B_ref(_layernorm(h, axis=-1), B_w1, B_b1, B_w2, B_b2)
    return h2
```

```python
import re
REG = re.compile(r'^(-?\|?)([vsa])(\d+)\|?$|^(-?\|?)([vsa])\[(\d+):(\d+)\]\|?$')
TRANS = ('v_exp_f32', 'v_log_f32', 'v_rcp_f32', 'v_rsq_f32', 'v_sqrt_f32', 'v_sin_f32', 'v_cos_f32')

def regs(tok):
    tok = tok.strip()
    if tok == 'vcc': return {'vcc'}
    if tok in ('vcc_lo', 'vcc_hi'): return {'vcc'}
    if tok in ('exec', 'exec_lo', 'exec_hi'): return {'exec'}
    if tok == 'm0': return {'m0'}
    m = REG.match(tok)
    if not m: return set()
    if m.group(2): return {m.group(2) + m.group(3)}
    return {m.group(5) + str(i) for i in range(int(m.group(6)), int(m.group(7)) + 1)}

class I:
    def __init__(s, line):
        s.line = line
        t = line.split(';')[0].strip()
        s.text = t
        p = t.split(None, 1)
        s.op = p[0]
        rest = p[1] if len(p) > 1 else ''
        ops = []; cur = ''; depth = 0
        for ch in rest:
            if ch == '[': depth += 1
            if ch == ']': depth -= 1
            if ch == ',' and depth == 0: ops.append(cur); cur = ''
            else: cur += ch
        ops.append(cur)
        last = ops[-1].strip().split(None, 1)
        s.mods = last[1] if len(last) > 1 else ''
        ops[-1] = last[0] if last else ''
        s.ops = [o.strip() for o in ops]
        op = s.op
        s.mfma = op.startswith('v_mfma')
        s.valu = op.startswith('v_') and not s.mfma and op != 'v_nop'
        s.vmem = op.startswith('global_') or op.startswith('buffer_')
        s.ds = op.startswith('ds_')
        s.dpp = s.valu and bool(re.search(r'quad_perm|row_|wave_', s.mods))
        s.sdwa = s.valu and ('sdwa' in op or 'dst_sel' in s.mods or ('op_sel' in s.mods and not op.startswith('v_pk_')))
        s.perml = op.startswith('v_permlane')
        s.rdl = op.startswith('v_readlane') or op.startswith('v_readfirstlane')
        s.trans = any(op.startswith(x) for x in TRANS)
        R = [regs(o) for o in s.ops]
        s.dst = set(); s.src = set()
        if s.valu or s.mfma:
            s.dst = set(R[0]); s.src = set().union(*R[1:]) if len(R) > 1 else set()
            if s.perml or op.startswith('v_swap'):
                s.dst |= R[1]; s.src |= R[0]
            if s.dpp or op.startswith('v_fmac') or op.startswith('v_dot2c') or 'd16' in op or op.startswith('v_writelane'):
                s.src |= R[0]
            if op.startswith('v_cmpx'): s.dst |= {'exec'}
            if '_co_' in op and len(R) > 1: s.dst |= R[1]
        elif s.vmem:
            if 'load' in op:
                s.dst = set(R[0]); s.src = set().union(*R[1:])
                if 'd16' in op: s.src |= R[0]
            else:
                s.src = set().union(*R)
        elif s.ds:
            if 'read' in op or 'bpermute' in op or 'permute' in op or 'swizzle' in op:
                s.dst = set(R[0]); s.src = set().union(*R[1:])
            else:
                s.src = set().union(*R)
        else:
            if R and not op.startswith('s_cmp') and not op.startswith('s_cbranch') and not op.startswith('s_bitcmp'):
                s.dst = set(R[0]); s.src = set().union(*R[1:]) if len(R) > 1 else set()
            else:
                s.src = set().union(*R) if R else set()
        s.wide_store = s.vmem and 'store' in op and ('x4' in op or 'x3' in op)
        if s.wide_store:
            s.sdata = R[1] if op.startswith('global_') else R[0]
        if s.mfma:
            s.A, s.B, s.C = R[1], R[2], R[3]
        s.states = 1
        if op == 's_nop': s.states = int(s.ops[0], 0) + 1

def V(x): return {r for r in x if r[0] in 'va' and r != 'vcc'}
def S(x): return {r for r in x if r[0] == 's' or r == 'vcc'}

def need(p, c):
    n = 0
    if p.valu:
        vd = V(p.dst); sd = S(p.dst)
        if vd & c.src:
            if c.dpp or c.perml or c.mfma: n = max(n, 2)
            if c.rdl: n = max(n, 1)
            if p.trans and (c.valu or c.mfma): n = max(n, 1)
            if p.sdwa and c.valu: n = max(n, 1)
        if sd & c.src:
            if c.valu: n = max(n, 4 if (c.rdl or c.op.startswith('v_writelane')) else 2)
            if c.vmem: n = max(n, 5)
        if 'exec' in p.dst:
            if c.dpp: n = max(n, 5)
            if c.perml or c.rdl or c.mfma: n = max(n, 4)
    if p.mfma:
        assert '16x16x32' in p.op
        if c.mfma:
            if p.dst & (c.A | c.B): n = max(n, 8)
            if p.dst & c.C and p.dst != c.C: n = max(n, 6)
            if p.dst & c.dst and p.dst != c.C: n = max(n, 8)
        else:
            if p.dst & (c.src | c.dst): n = max(n, 8)
            if c.valu and (p.C & c.dst): n = max(n, 3)
    if p.wide_store and (p.sdata & c.dst): n = max(n, 2)
    if 'm0' in p.dst and not p.valu and ('lds' in c.op or 'lds' in c.mods or 'addtid' in c.op): n = max(n, 1)
    return n

def req(hist, c):
    return max([need(p, c) - d for p, d in hist] + [0])

def advance(hist, c):
    h = [(p, d + c.states) for p, d in hist if d + c.states < 10]
    h.append((c, 0))
    return h

def pad(lines):
    out = []; hist = []; snaps = {}; labpos = {}; nn = 0
    dead = False
    for ln in lines:
        t = ln.split(';')[0].strip()
        if not t or t.startswith('.'):
            out.append(ln); continue
        if t.endswith(':'):
            lab = t[:-1]
            if dead: hist = []
            dead = False
            for s in snaps.get(lab, []): hist = hist + s
            labpos[lab] = len(out)
            out.append(ln); continue
        c = I(ln)
        n = req(hist, c)
        if n > 0:
            nop = I(f's_nop {n-1}')
            out.append(f's_nop {n-1}'); hist = advance(hist, nop); nn += n
        if c.op.startswith('s_cbranch') or c.op == 's_branch':
            tgt = c.ops[0]
            h2 = advance(hist, c)
            if tgt in labpos:
                hh = h2; worst = 0; k = labpos[tgt] + 1; cnt = 0
                while cnt < 10 and k < len(out):
                    tt = out[k].split(';')[0].strip(); k += 1
                    if not tt or tt.startswith('.') or tt.endswith(':'): continue
                    ci = I(tt); worst = max(worst, req(hh, ci))
                    hh = [(p, d + ci.states) for p, d in hh]; cnt += ci.states
                if worst:
                    out.append(f's_nop {worst-1}'); hist = advance(hist, I(f's_nop {worst-1}'))
            else:
                snaps.setdefault(tgt, []).append(h2)
        out.append(ln)
        hist = advance(hist, c)
        if c.op in ('s_branch', 's_endpgm'): dead = True
    return out, nn
```

```python
import sys, os
sys.path.insert(0, os.path.dirname(__file__))
from hz import pad
NAME = "sequential_preLN__sliding_block_cached__dense_activation_squared_relu__decode"

DEF = dict(ts=0, nt="nt", thr=8, wpos=1, spin=200000, ffn_early=0, prio=1, qwait=1)
def gen(**kw):
    O = dict(DEF); O.update(kw)
    NT = O['nt'].replace('+', ' ') if O['nt'] != '-' else ''
    THR = O['thr']
    L = []
    tail = []
    def g(s):
        for l in s.strip('\n').split('\n'):
            if l.strip(): L.append(l.strip())
    QP, OP, ML, YP, FP, TSB = 0x10000, 0x30000, 0x50000, 0x60000, 0x70000, 0x100000
    LQ, LM, LO, LY, LH, LP = 0, 256, 512, 2560, 4608, 6656
    LDS = 8704
    nts = [0]
    def ts(i):
        if O['ts']: g(f"s_memrealtime s[{64+2*i}:{65+2*i}]")
    def ts_end():
        if not O['ts']: return
        g(f"""
        s_waitcnt lgkmcnt(0)
        s_mov_b64 exec, 1
        s_lshl_b32 s60, s2, 3
        s_add_u32 s60, s60, s3
        s_lshl_b32 s60, s60, 7
        s_add_u32 s60, s60, {TSB}
        v_mov_b32 v8, s60
        """)
        for i in range(16):
            g(f"v_mov_b32 v9, s{64+2*i}")
            g(f"global_store_dword v8, v9, s[28:29] offset:{4*i}")
    cnt = [0]
    def poll(loads, check, name):
        cnt[0] += 1; n = f"{name}{cnt[0]}"
        g(f"s_mov_b32 s36, {O['spin']}")
        g(f"L_{n}:")
        g(loads); g("s_waitcnt vmcnt(0)"); g(check)
        g(f"s_cbranch_vccnz L_{n}_r")
        g(f"L_{n}_d:")
        tail.append(f"L_{n}_r:\ns_sub_u32 s36, s36, 1\ns_cbranch_scc0 L_{n}\ns_branch L_{n}_d")
    def chk(regtags, acc):
        s = []
        rs = [r for r, t in regtags]
        for r, t in regtags: s.append(f"v_xor_b32 v{r}, v{r}, v{t}")
        s.append(f"v_or3_b32 v{acc}, v{rs[0]}, v{rs[1]}, v{rs[2]}")
        k = 3
        while k + 1 < len(rs):
            s.append(f"v_or3_b32 v{acc}, v{acc}, v{rs[k]}, v{rs[k+1]}"); k += 2
        if k < len(rs): s.append(f"v_or_b32 v{acc}, v{acc}, v{rs[k]}")
        s.append(f"v_and_b32 v{acc}, s61, v{acc}")
        s.append(f"v_cmp_ne_u32 vcc, 0, v{acc}")
        return "\n".join(s)
    def xrow(op, r, t, rors=(8, 4, 2, 1)):
        for k in rors: g(f"{op} v{r}, v{r}, v{r} row_ror:{k} row_mask:0xf bank_mask:0xf")
        for sw in (16, 32):
            g(f"v_mov_b32 v{t}, v{r}")
            g(f"v_permlane{sw}_swap_b32 v{r}, v{t}")
            g(f"{op} v{r}, v{r}, v{t}")
    def rs4(a):
        g(f"""
        v_permlane16_swap_b32 v{a}, v{a+1}
        v_permlane16_swap_b32 v{a+2}, v{a+3}
        v_add_f32 v{a}, v{a}, v{a+1}
        v_add_f32 v{a+2}, v{a+2}, v{a+3}
        v_permlane32_swap_b32 v{a}, v{a+2}
        v_add_f32 v{a}, v{a}, v{a+2}
        """)
    def masks():
        g("""
        v_and_b32 v8, 1, v0
        v_lshlrev_b32 v8, 4, v8
        v_mov_b32 v9, 0xffff
        v_lshlrev_b32 v9, v8, v9
        v_and_b32 v3, 3, v0
        v_lshrrev_b32 v8, 1, v0
        v_and_or_b32 v3, v8, 4, v3
        v_lshrrev_b32 v8, 1, v3
        v_cmp_eq_u32 vcc, 0, v8
        v_cndmask_b32 v4, 0, v9, vcc
        v_cmp_eq_u32 vcc, 1, v8
        v_cndmask_b32 v5, 0, v9, vcc
        v_cmp_eq_u32 vcc, 2, v8
        v_cndmask_b32 v6, 0, v9, vcc
        v_cmp_eq_u32 vcc, 3, v8
        v_cndmask_b32 v7, 0, v9, vcc
        """)
    MF = "v_mfma_f32_16x16x32_bf16"
    DP = "row_mask:0xf bank_mask:0xf"
    ts(0)
    g("""
    s_cmp_ge_u32 s2, 256
    s_cbranch_scc1 L_end
    s_load_dwordx16 s[4:19], s[0:1], 0
    s_load_dwordx8 s[20:27], s[0:1], 64
    s_load_dwordx2 s[28:29], s[0:1], 96
    v_lshrrev_b32 v1, 6, v0
    v_and_b32 v0, 63, v0
    v_readfirstlane_b32 s3, v1
    v_lshrrev_b32 v1, 4, v0
    v_and_b32 v2, 15, v0
    s_and_b32 s32, s2, 7
    s_lshr_b32 s33, s2, 3
    s_and_b32 s30, s33, 3
    s_lshl_b32 s35, s32, 2
    s_add_u32 s30, s30, s35
    s_lshr_b32 s31, s33, 2
    s_mov_b32 s40, 0x0f0f0f0f
    s_mov_b32 s41, 0x0f0f0f0f
    s_mov_b32 s42, 0xffff0000
    s_mov_b32 s43, 0x3fb8aa3b
    s_movk_i32 s61, 0xff
    s_cmp_lg_u32 s3, 0
    s_cbranch_scc1 L_comp
    """)
    if O['prio']: g("s_setprio 3")
    g(f"""
    v_lshlrev_b32 v10, 4, v0
    s_lshl_b32 s35, s31, 7
    v_lshl_add_u32 v11, v0, 1, s35
    v_mov_b32 v24, 0
    v_lshlrev_b32 v25, 17, v1
    v_lshl_add_u32 v25, v2, 4, v25
    s_lshl_b32 s35, s31, 19
    s_lshl_b32 s37, s30, 8
    s_add_u32 s35, s35, s37
    s_waitcnt lgkmcnt(0)
    s_load_dword s34, s[28:29], 0
    global_load_dwordx4 v[12:15], v10, s[4:5]
    global_load_short_d16_hi v24, v11, s[4:5]
    s_add_u32 s10, s10, s35
    s_addc_u32 s11, s11, 0
    """)
    for t in range(16):
        g(f"global_load_dwordx4 v[{32+4*t}:{35+4*t}], v25, s[10:11] {NT}")
        if t < 15: g("v_add_u32 v25, 0x2000, v25")
    ts(1)
    masks()
    g(f"""
    s_lshl_b32 s35, s30, 12
    s_add_u32 s35, s35, {QP}
    s_add_u32 s44, s28, s35
    s_addc_u32 s45, s29, 0
    s_lshl_b32 s35, s31, 9
    v_lshl_add_u32 v26, v1, 3, v3
    v_lshl_add_u32 v27, v26, 4, s35
    s_waitcnt vmcnt(16)
    """)
    ts(2)
    for i in range(4):
        g(f"v_lshlrev_b32 v{16+2*i}, 16, v{12+i}")
        g(f"v_and_b32 v{17+2*i}, s42, v{12+i}")
    g("""
    v_pk_add_f32 v[8:9], v[16:17], v[18:19]
    v_pk_add_f32 v[12:13], v[20:21], v[22:23]
    v_pk_add_f32 v[8:9], v[8:9], v[12:13]
    v_add_f32 v8, v8, v9
    """)
    xrow("v_add_f32", 8, 9)
    g("v_mul_f32 v8, 0x3b000000, v8")
    for i in range(4):
        g(f"v_pk_add_f32 v[{16+2*i}:{17+2*i}], v[{16+2*i}:{17+2*i}], v[8:9] op_sel_hi:[1,0] neg_lo:[0,1] neg_hi:[0,1]")
    g("""
    v_pk_mul_f32 v[12:13], v[16:17], v[16:17]
    v_pk_fma_f32 v[12:13], v[18:19], v[18:19], v[12:13]
    v_pk_fma_f32 v[12:13], v[20:21], v[20:21], v[12:13]
    v_pk_fma_f32 v[12:13], v[22:23], v[22:23], v[12:13]
    v_add_f32 v12, v12, v13
    """)
    xrow("v_add_f32", 12, 13)
    g("""
    v_mul_f32 v12, 0x3b000000, v12
    v_cvt_pk_bf16_f32 v8, v8, v12
    v_and_b32 v12, s42, v8
    v_lshlrev_b32 v8, 16, v8
    v_add_f32 v12, 0x3727c5ac, v12
    v_sub_f32 v24, v24, v8
    v_cvt_pk_bf16_f32 v12, v12, v24
    v_and_b32 v24, s42, v12
    v_lshlrev_b32 v12, 16, v12
    v_sqrt_f32 v12, v12
    v_cvt_pk_bf16_f32 v12, v12, v12
    v_lshlrev_b32 v12, 16, v12
    v_rcp_f32 v12, v12
    v_mul_f32 v24, v24, v12
    v_cvt_pk_bf16_f32 v24, v24, v24
    """)
    for t in range(16):
        for r in range(4):
            g(f"v_and_b32 v{96+4*t+r}, v24, v{4+r} row_newbcast:{t} {DP}")
        if t >= 1:
            u = t - 1
            g(f"s_waitcnt vmcnt({15-u})")
            g(f"{MF} v[160:163], v[{32+4*u}:{35+4*u}], v[{96+4*u}:{99+4*u}], {'0' if u == 0 else 'v[160:163]'}")
    g(f"""
    s_waitcnt vmcnt(0) lgkmcnt(0)
    {MF} v[160:163], v[92:95], v[156:159], v[160:163]
    s_add_u32 s34, s34, 1
    v_add_u32 v26, s34, v26
    v_and_b32 v28, 31, v0
    v_add_u32 v28, s34, v28
    v_and_b32 v28, s61, v28
    s_mov_b64 exec, s[40:41]
    """)
    for r in range(4): g(f"v_add_u32 v{160+r}, 0x80, v{160+r}")
    for r in range(4): g(f"v_bfi_b32 v{160+r}, s61, v26, v{160+r}")
    g("global_store_dwordx4 v27, v[160:163], s[44:45] sc1")
    g("s_mov_b64 exec, -1")
    ts(3)
    g(f"""
    v_bfe_u32 v8, v0, 3, 2
    v_lshlrev_b32 v8, 6, v8
    v_lshrrev_b32 v9, 5, v0
    v_lshl_add_u32 v8, v9, 5, v8
    v_and_b32 v9, 7, v0
    v_lshl_add_u32 v29, v9, 1, v8
    """)
    if O['qwait']: g("s_waitcnt vmcnt(0)")
    ts(4)
    poll("\n".join(f"global_load_dwordx4 v[{164+4*u}:{167+4*u}], v10, s[44:45] offset:{1024*u} sc1" for u in range(4)),
         chk([(164 + i, 28) for i in range(16)], 8), "q")
    ts(5)
    g(f"""
    v_pk_add_f32 v[164:165], v[164:165], v[168:169]
    v_pk_add_f32 v[166:167], v[166:167], v[170:171]
    v_pk_add_f32 v[172:173], v[172:173], v[176:177]
    v_pk_add_f32 v[174:175], v[174:175], v[178:179]
    v_pk_add_f32 v[164:165], v[164:165], v[172:173]
    v_pk_add_f32 v[166:167], v[166:167], v[174:175]
    v_permlane32_swap_b32 v164, v166
    v_permlane32_swap_b32 v165, v167
    v_pk_add_f32 v[164:165], v[164:165], v[166:167]
    v_cvt_pk_bf16_f32 v164, v164, v165
    ds_write_b16 v29, v164 offset:{LQ}
    ds_write_b16_d16_hi v29, v164 offset:{LQ+16}
    s_waitcnt lgkmcnt(0)
    s_barrier
    s_lshl_b32 s35, s30, 7
    s_lshl_b32 s37, s31, 4
    s_add_u32 s35, s35, s37
    s_add_u32 s35, s35, {ML}
    v_mov_b32 v27, s35
    v_and_b32 v8, 3, v0
    v_lshlrev_b32 v8, 3, v8
    v_mov_b32 v13, s34
    v_mov_b32 v15, s34
    s_barrier
    ds_read_b64 v[10:11], v8 offset:{LM}
    s_waitcnt lgkmcnt(0)
    v_max_f32 v12, v10, v10 quad_perm:[1,0,3,2] {DP}
    v_max_f32 v12, v12, v12 quad_perm:[2,3,0,1] {DP}
    v_sub_f32 v10, v10, v12
    v_mul_f32 v10, s43, v10
    v_exp_f32 v10, v10
    v_mul_f32 v14, v10, v11
    v_add_f32 v14, v14, v14 quad_perm:[1,0,3,2] {DP}
    v_add_f32 v14, v14, v14 quad_perm:[2,3,0,1] {DP}
    s_mov_b64 exec, 1
    global_store_dwordx4 v27, v[12:15], s[28:29] sc1
    """)
    ts(6)
    ts_end()
    g("s_endpgm")
    g(f"""
    L_comp:
    s_sub_u32 s38, s3, 1
    v_lshrrev_b32 v8, 2, v2
    v_lshlrev_b32 v8, 8, v8
    v_lshl_add_u32 v8, v1, 6, v8
    v_and_b32 v9, 3, v0
    v_lshl_add_u32 v11, v9, 4, v8
    v_lshlrev_b32 v10, 4, v0
    s_lshl_b32 s35, s30, 20
    s_lshl_b32 s37, s31, 15
    s_add_u32 s35, s35, s37
    s_lshl_b32 s37, s38, 13
    s_add_u32 s35, s35, s37
    s_add_u32 s35, s35, {786432+4096}
    s_waitcnt lgkmcnt(0)
    s_load_dword s34, s[28:29], 0
    s_add_u32 s6, s6, s35
    s_addc_u32 s7, s7, 0
    s_add_u32 s8, s8, s35
    s_addc_u32 s9, s9, 0
    """)
    nl = 0
    for t in range(8):
        if nl >= THR: g(f"s_waitcnt vmcnt({THR-1})")
        g(f"global_load_dwordx4 v[{32+4*t}:{35+4*t}], v11, s[6:7] offset:{1024*t-4096} {NT}"); nl += 1
    ts(1)
    masks()
    for r in range(160, 176): g(f"v_mov_b32 v{r}, 0")
    g(f"""
    v_lshlrev_b32 v12, 6, v1
    v_and_b32 v9, 3, v0
    v_lshl_add_u32 v12, v9, 4, v12
    s_lshl_b32 s35, s38, 3
    v_mov_b32 v13, s35
    v_lshl_add_u32 v14, v1, 3, v3
    s_lshl_b32 s35, s38, 9
    v_lshl_add_u32 v14, v14, 4, s35
    s_mov_b32 s62, 0x55555555
    s_mov_b32 s63, 0x55555555
    s_mov_b32 s46, 0x000f000f
    s_mov_b32 s47, 0x000f000f
    s_lshl_b64 s[48:49], s[46:47], 4
    s_lshl_b64 s[50:51], s[46:47], 8
    s_lshl_b64 s[52:53], s[46:47], 12
    s_cmp_lt_u32 s33, 16
    s_cbranch_scc1 L_att_wo
    s_sub_u32 s39, s2, 128
    s_cmp_lt_u32 s39, 43
    s_cbranch_scc1 L_att_ffn
    """)

    def w_setup(role):
        if role == 'wo':
            g(f"""
            s_and_b32 s54, s33, 1
            s_lshl_b32 s35, s32, 1
            s_add_u32 s56, s54, s35
            s_lshl_b32 s54, s56, 1
            s_lshr_b32 s35, s38, 1
            s_add_u32 s54, s54, s35
            s_lshr_b32 s55, s33, 1
            s_lshl_b32 s35, s54, 17
            s_and_b32 s37, s38, 1
            s_lshl_b32 s37, s37, 14
            s_add_u32 s35, s35, s37
            s_lshl_b32 s37, s55, 7
            s_add_u32 s35, s35, s37
            s_add_u32 s35, s35, 4096
            s_add_u32 s12, s12, s35
            s_addc_u32 s13, s13, 0
            v_lshrrev_b32 v8, 3, v2
            v_lshlrev_b32 v8, 5, v8
            v_and_b32 v9, 1, v1
            v_lshl_add_u32 v8, v9, 3, v8
            v_lshrrev_b32 v9, 1, v1
            v_add_u32 v8, v8, v9
            v_lshlrev_b32 v8, 10, v8
            v_and_b32 v9, 7, v0
            v_lshl_add_u32 v16, v9, 4, v8
            v_add_u32 v17, 0x10000, v16
            """)
        if role == 'ffn':
            g(f"""
            s_mul_i32 s35, s38, {128*2752}
            s_lshl_b32 s37, s39, 6
            s_add_u32 s35, s35, s37
            s_add_u32 s16, s16, s35
            s_addc_u32 s17, s17, 0
            s_lshl_b32 s35, s39, 15
            s_lshl_b32 s37, s38, 8
            s_add_u32 s35, s35, s37
            s_add_u32 s20, s20, s35
            s_addc_u32 s21, s21, 0
            v_lshrrev_b32 v8, 2, v2
            v_lshl_add_u32 v18, v8, 3, v1
            v_mul_u32_u24 v8, 2752, v18
            v_and_b32 v9, 3, v0
            v_lshl_add_u32 v16, v9, 4, v8
            v_lshrrev_b32 v8, 3, v2
            v_lshl_add_u32 v8, v1, 1, v8
            v_lshlrev_b32 v8, 12, v8
            v_and_b32 v9, 7, v0
            v_lshl_add_u32 v17, v9, 4, v8
            v_lshl_add_u32 v19, v1, 3, v9
            s_lshl_b32 s35, s39, 6
            v_lshl_add_u32 v19, v19, 1, s35
            v_and_b32 v8, 1, v0
            v_lshl_add_u32 v18, v8, 2, v18
            v_bfe_u32 v8, v0, 1, 1
            v_lshl_add_u32 v18, v8, 5, v18
            s_lshl_b32 s35, s38, 8
            v_lshl_add_u32 v18, v18, 1, s35
            v_mov_b32 v20, 0
            v_mov_b32 v21, 0
            v_mov_b32 v22, 0
            """)
    def w_loads(role, part):
        out = []
        if role == 'wo' and part == 0:
            for n in range(2):
                for t in range(4):
                    r = 96 + 16 * n + 4 * t
                    out.append(f"global_load_dwordx4 v[{r}:{r+3}], v{16+n}, s[12:13] offset:{2048*t-4096} {NT}")
        if role == 'ffn' and part == 0:
            for n in range(2):
                for t in range(4):
                    r = 96 + 16 * n + 4 * t
                    off = (64 * n + 32 * (t // 2) + 4 * (t % 2)) * 2752
                    out.append(f"v_add_u32 v23, {off}, v16\nglobal_load_dwordx4 v[{r}:{r+3}], v23, s[16:17] {NT}")
        if role == 'ffn' and part == 1:
            out.append("global_load_short_d16_hi v20, v18, s[4:5]")
            out.append("global_load_short_d16_hi v21, v18, s[4:5] offset:128")
            out.append("global_load_short_d16_hi v22, v19, s[18:19]")
            for n in range(2):
                for t in range(4):
                    r = 128 + 16 * n + 4 * t
                    out.append(f"global_load_dwordx4 v[{r}:{r+3}], v17, s[20:21] offset:{1024*t+128*n} {NT}")
        return out

    def attention(role):
        w_setup(role)
        thr = THR
        for t in range(8):
            if 8 + t >= thr: g(f"s_waitcnt vmcnt({thr-1})")
            g(f"global_load_dwordx4 v[{64+4*t}:{67+4*t}], v10, s[8:9] offset:{1024*t-4096} {NT}")
        after = 0
        W = w_loads(role, 0) + w_loads(role, 1)
        early = O['ffn_early'] if role == 'ffn' else 0
        for x in W[:early]: g(x); after += 1
        W = W[early:]
        ts(2)
        g("s_barrier")
        ts(3)
        for u in range(4):
            g(f"s_mov_b64 exec, s[{46+2*u}:{47+2*u}]")
            g(f"ds_read_b128 v[{160+4*u}:{163+4*u}], v12 offset:{LQ}")
        g("s_mov_b64 exec, -1")
        if O['wpos'] == 0:
            for x in W: g(x); after += 1
            W = []
        g(f"s_waitcnt vmcnt({8+after}) lgkmcnt(0)")
        for u in range(4):
            for c in range(2):
                t = 4 * c + u
                g(f"{MF} v[{176+4*c}:{179+4*c}], v[{32+4*t}:{35+4*t}], v[{160+4*u}:{163+4*u}], {'0' if u == 0 else f'v[{176+4*c}:{179+4*c}]'}")
        g("s_add_u32 s34, s34, 1")
        if O['wpos'] == 1:
            for x in W: g(x); after += 1
            W = []
        for c in range(2):
            g(f"v_mov_b32 v{24+c}, v{176+4*c} quad_perm:[0,0,0,0] {DP}")
        for r in range(1, 4):
            for c in range(2):
                g(f"v_add_f32 v{24+c}, v{176+4*c+r}, v{24+c} quad_perm:[{r},{r},{r},{r}] {DP}")
        g(f"""
        v_cvt_pk_bf16_f32 v24, v24, v25
        v_and_b32 v25, s42, v24
        v_lshlrev_b32 v24, 16, v24
        v_mul_f32 v24, 0x3db504f3, v24
        v_mul_f32 v25, 0x3db504f3, v25
        v_cvt_pk_bf16_f32 v24, v24, v25
        v_and_b32 v25, s42, v24
        v_lshlrev_b32 v24, 16, v24
        v_max_f32 v26, v24, v25
        """)
        xrow("v_max_f32", 26, 27, (4, 8))
        g("""
        v_sub_f32 v28, v24, v26
        v_sub_f32 v29, v25, v26
        v_mul_f32 v28, s43, v28
        v_mul_f32 v29, s43, v29
        v_exp_f32 v28, v28
        v_exp_f32 v29, v29
        v_add_f32 v27, v28, v29
        """)
        xrow("v_add_f32", 27, 28, (4, 8))
        g(f"""
        s_mov_b64 exec, 1
        ds_write_b64 v13, v[26:27] offset:{LM}
        s_mov_b64 exec, -1
        v_and_b32 v8, 3, v0
        v_lshlrev_b32 v8, 3, v8
        s_waitcnt lgkmcnt(0)
        s_barrier
        ds_read_b32 v26, v8 offset:{LM}
        s_waitcnt lgkmcnt(0)
        v_max_f32 v26, v26, v26 quad_perm:[1,0,3,2] {DP}
        v_max_f32 v26, v26, v26 quad_perm:[2,3,0,1] {DP}
        v_sub_f32 v28, v24, v26
        v_sub_f32 v29, v25, v26
        v_mul_f32 v28, s43, v28
        v_mul_f32 v29, s43, v29
        v_exp_f32 v28, v28
        v_exp_f32 v29, v29
        v_cvt_pk_bf16_f32 v28, v28, v28
        v_cvt_pk_bf16_f32 v29, v29, v29
        """)
        for t in range(8):
            for r in range(4):
                g(f"v_and_b32 v{32+4*t+r}, v{28+t//4}, v{4+r} row_newbcast:{4*(t%4)} {DP}")
        for x in W: g(x); after += 1
        ts(4)
        g(f"""
        s_lshl_b32 s35, s30, 12
        s_lshl_b32 s37, s31, 9
        s_add_u32 s35, s35, s37
        s_add_u32 s35, s35, {OP}
        v_lshl_add_u32 v24, v0, 3, s35
        v_lshrrev_b32 v25, 1, v0
        v_add_u32 v25, s34, v25
        v_and_b32 v26, 31, v0
        v_lshrrev_b32 v27, 5, v0
        v_lshlrev_b32 v27, 10, v27
        v_lshl_add_u32 v26, v26, 4, v27
        """)
        pre(role)
        for t in range(8):
            g(f"s_waitcnt vmcnt({7-t+after})")
            g(f"{MF} v[184:187], v[{64+4*t}:{67+4*t}], v[{32+4*t}:{35+4*t}], {'0' if t == 0 else 'v[184:187]'}")
        g(f"""
        s_mov_b64 exec, s[40:41]
        s_cmp_lg_u32 s38, 0
        ds_write_b128 v14, v[184:187] offset:{LO}
        s_mov_b64 exec, -1
        s_waitcnt lgkmcnt(0)
        s_barrier
        s_cbranch_scc1 L_nopub_{role}
        ds_read_b128 v[32:35], v26 offset:{LO}
        ds_read_b128 v[36:39], v26 offset:{LO+512}
        s_waitcnt lgkmcnt(0)
        v_pk_add_f32 v[32:33], v[32:33], v[36:37]
        v_pk_add_f32 v[34:35], v[34:35], v[38:39]
        v_permlane32_swap_b32 v32, v34
        v_permlane32_swap_b32 v33, v35
        v_pk_add_f32 v[32:33], v[32:33], v[34:35]
        v_bfi_b32 v32, s61, v25, v32
        v_bfi_b32 v33, s61, v25, v33
        v_mov_b32 v34, v32 quad_perm:[1,1,3,3] {DP}
        v_mov_b32 v35, v33 quad_perm:[1,1,3,3] {DP}
        s_mov_b64 exec, s[62:63]
        global_store_dwordx4 v24, v[32:35], s[28:29] sc1
        s_mov_b64 exec, -1
        L_nopub_{role}:
        """)
        ts(5)

    def pre(role):
        if role == 'wo':
            g(f"""
            s_lshl_b32 s35, s54, 7
            s_add_u32 s35, s35, {ML}
            v_lshrrev_b32 v8, 3, v0
            v_lshl_add_u32 v160, v8, 4, s35
            s_lshl_b32 s35, s54, 12
            s_and_b32 s37, s38, 1
            s_lshl_b32 s37, s37, 8
            s_add_u32 s35, s35, s37
            s_add_u32 s35, s35, {OP}
            v_lshl_add_u32 v8, v8, 9, s35
            v_and_b32 v9, 7, v0
            v_lshl_add_u32 v161, v9, 4, v8
            s_lshr_b32 s37, s37, 4
            s_add_u32 s37, s37, s34
            v_add_u32 v9, s37, v9
            v_and_b32 v162, s61, v9
            v_add_u32 v9, 8, v9
            v_and_b32 v163, s61, v9
            v_lshrrev_b32 v8, 1, v1
            s_lshl_b32 s35, s38, 9
            v_lshl_add_u32 v8, v8, 8, s35
            v_and_b32 v9, 1, v1
            v_lshl_add_u32 v9, v9, 3, v3
            v_lshl_add_u32 v164, v9, 4, v8
            v_lshlrev_b32 v8, 9, v1
            v_lshl_add_u32 v165, v2, 4, v8
            s_lshl_b32 s35, s55, 12
            s_lshl_b32 s37, s56, 8
            s_add_u32 s35, s35, s37
            s_add_u32 s35, s35, {YP}
            v_lshl_add_u32 v166, v0, 2, s35
            v_lshrrev_b32 v8, 2, v0
            v_add_u32 v167, s34, v8
            s_mov_b32 s58, 0x0f0f0f0f
            s_mov_b32 s59, 0xf0f0f0f0
            """)
        if role == 'ffn':
            g(f"""
            s_lshl_b32 s35, s38, 13
            s_add_u32 s35, s35, {YP+4096}
            v_add_u32 v160, s35, v10
            v_add_u32 v8, s34, v2
            v_and_b32 v161, s61, v8
            s_lshl_b32 s35, s38, 9
            v_lshl_add_u32 v162, v0, 3, s35
            v_lshlrev_b32 v163, 5, v0
            v_or_b32 v164, v4, v6
            v_or_b32 v165, v5, v7
            v_lshl_add_u32 v8, v1, 7, s35
            v_and_b32 v9, 3, v0
            v_lshl_add_u32 v166, v9, 4, v8
            s_mul_i32 s35, s38, {4*6144}
            s_lshl_b32 s37, s39, 7
            s_add_u32 s35, s35, s37
            s_add_u32 s35, s35, {FP}
            v_mul_u32_u24 v8, 6144, v1
            v_lshl_add_u32 v8, v3, 4, v8
            v_add_u32 v167, s35, v8
            v_add_u32 v168, s34, v3
            v_mov_b32 v169, 0
            s_mov_b32 s58, 0x00f0000f
            s_mov_b32 s59, 0xf0000f00
            """)

    attention('pl')
    g(f"""
    s_sub_u32 s39, s2, 192
    s_cmp_lt_u32 s39, 32
    s_cselect_b32 s35, 1, 99
    s_cmp_eq_u32 s38, s35
    s_cbranch_scc0 L_fin
    """)
    g(f"""
    s_lshr_b32 s54, s39, 1
    s_and_b32 s55, s39, 1
    v_and_b32 v9, 3, v0
    s_lshl_b32 s35, s54, 5
    s_lshl_b32 s37, s55, 2
    s_add_u32 s35, s35, s37
    v_lshl_add_u32 v8, v1, 3, v9
    v_add_u32 v8, s35, v8
    v_lshlrev_b32 v16, 1, v8
    v_mov_b32 v20, 0
    v_mov_b32 v21, 0
    global_load_short_d16_hi v20, v16, s[4:5]
    global_load_short_d16_hi v21, v16, s[22:23]
    s_lshr_b32 s35, s54, 1
    s_lshl_b32 s35, s35, 12
    s_and_b32 s37, s39, 3
    s_lshl_b32 s57, s37, 4
    s_add_u32 s35, s35, s57
    s_add_u32 s35, s35, {YP}
    v_lshrrev_b32 v8, 2, v2
    v_lshl_add_u32 v8, v8, 8, s35
    v_lshl_add_u32 v8, v1, 6, v8
    v_lshl_add_u32 v17, v9, 2, v8
    s_add_u32 s37, s37, s34
    v_lshl_add_u32 v8, v1, 2, s37
    v_and_b32 v18, s61, v8
    s_mul_i32 s35, s54, 6144
    s_lshl_b32 s37, s55, 6
    s_add_u32 s35, s35, s37
    s_add_u32 s35, s35, {FP+2048}
    v_lshrrev_b32 v8, 2, v0
    v_lshl_add_u32 v8, v8, 7, s35
    v_lshl_add_u32 v19, v9, 4, v8
    s_lshl_b32 s37, s55, 2
    s_add_u32 s37, s37, s34
    v_add_u32 v8, s37, v9
    v_and_b32 v22, s61, v8
    s_mov_b32 s58, -1
    s_mov_b32 s59, 0xfff
    """)
    poll("\n".join(f"global_load_dword v{32+u}, v17, s[28:29] offset:{1024*u} sc1" for u in range(4)),
         chk([(32 + i, 18) for i in range(4)], 8), "rh")
    g(f"""
    v_add_f32 v32, v32, v33
    v_add_f32 v34, v34, v35
    v_add_f32 v32, v32, v34
    v_add_f32 v32, v32, v32 row_ror:4 {DP}
    v_add_f32 v32, v32, v32 row_ror:8 {DP}
    v_cvt_pk_bf16_f32 v32, v32, v32
    v_lshlrev_b32 v32, 16, v32
    v_add_f32 v20, v20, v32
    v_cvt_pk_bf16_f32 v20, v20, v20
    v_and_b32 v20, s42, v20
    """)
    ts(6)
    poll("""
    v_mov_b32 v40, v22
    v_mov_b32 v41, v22
    v_mov_b32 v42, v22
    v_mov_b32 v43, v22
    global_load_dwordx4 v[32:35], v19, s[28:29] offset:-2048 sc1
    global_load_dwordx4 v[36:39], v19, s[28:29] sc1
    s_mov_b64 exec, s[58:59]
    global_load_dwordx4 v[40:43], v19, s[28:29] offset:2048 sc1
    s_mov_b64 exec, -1
    """, chk([(32 + i, 22) for i in range(12)], 8), "rf")
    ts(7)
    g(f"""
    v_pk_add_f32 v[32:33], v[32:33], v[36:37]
    v_pk_add_f32 v[34:35], v[34:35], v[38:39]
    v_pk_add_f32 v[32:33], v[32:33], v[40:41]
    v_pk_add_f32 v[34:35], v[34:35], v[42:43]
    """)
    rs4(32)
    g(f"""
    v_add_f32 v32, v32, v32 row_ror:4 {DP}
    v_add_f32 v32, v32, v32 row_ror:8 {DP}
    v_cvt_pk_bf16_f32 v32, v32, v32
    v_lshlrev_b32 v32, 16, v32
    v_add_f32 v32, v32, v21
    v_cvt_pk_bf16_f32 v32, v32, v32
    v_lshlrev_b32 v32, 16, v32
    v_add_f32 v32, v32, v20
    v_cvt_pk_bf16_f32 v32, v32, v32
    s_mov_b64 exec, s[46:47]
    global_store_short v16, v32, s[24:25]
    s_cmp_lg_u32 s39, 0
    s_cbranch_scc1 L_fin
    s_mov_b64 exec, 1
    v_mov_b32 v8, 0
    v_mov_b32 v9, s34
    global_store_dword v8, v9, s[28:29]
    s_branch L_fin
    """)
    g("L_att_wo:")
    attention('wo')
    poll("global_load_dwordx4 v[40:43], v160, s[28:29] sc1",
         "v_xor_b32 v41, s34, v41\nv_xor_b32 v43, s34, v43\nv_or_b32 v41, v41, v43\nv_cmp_ne_u32 vcc, 0, v41", "ml")
    g("v_mov_b32 v44, v40")
    xrow("v_max_f32", 44, 45, (8,))
    g("""
    v_sub_f32 v40, v40, v44
    v_mul_f32 v40, s43, v40
    v_exp_f32 v40, v40
    v_mul_f32 v44, v40, v42
    """)
    xrow("v_add_f32", 44, 45, (8,))
    g("""
    v_rcp_f32 v44, v44
    v_mul_f32 v40, v40, v44
    """)
    ts(6)
    poll("global_load_dwordx4 v[32:35], v161, s[28:29] sc1\nglobal_load_dwordx4 v[36:39], v161, s[28:29] offset:128 sc1",
         chk([(32 + i, 162 + i // 4) for i in range(8)], 8), "o")
    ts(7)
    for i in range(4):
        g(f"v_pk_mul_f32 v[{32+2*i}:{33+2*i}], v[{32+2*i}:{33+2*i}], v[40:41] op_sel_hi:[1,0]")
    g(f"""
    v_permlane16_swap_b32 v32, v33
    v_permlane16_swap_b32 v34, v35
    v_permlane16_swap_b32 v36, v37
    v_permlane16_swap_b32 v38, v39
    v_add_f32 v32, v32, v33
    v_add_f32 v34, v34, v35
    v_add_f32 v36, v36, v37
    v_add_f32 v38, v38, v39
    v_permlane32_swap_b32 v32, v34
    v_permlane32_swap_b32 v36, v38
    v_add_f32 v32, v32, v34
    v_add_f32 v36, v36, v38
    v_add_f32 v32, v32, v32 row_ror:8 {DP}
    v_add_f32 v36, v36, v36 row_ror:8 {DP}
    v_cvt_pk_bf16_f32 v32, v32, v32
    v_cvt_pk_bf16_f32 v36, v36, v36
    """)
    for k in range(9):
        if k < 8:
            n, t = k // 4, k % 4
            for r in range(4):
                g(f"v_and_b32 v{64+4*k+r}, v{32+4*n}, v{4+r} quad_perm:[{t},{t},{t},{t}] {DP}")
        if k >= 1:
            u = k - 1
            g(f"{MF} v[184:187], v[{96+4*u}:{99+4*u}], v[{64+4*u}:{67+4*u}], {'0' if u == 0 else 'v[184:187]'}")
    g(f"""
    s_mov_b64 exec, s[58:59]
    s_cmp_lg_u32 s38, 0
    ds_write_b128 v164, v[184:187] offset:{LY}
    s_mov_b64 exec, -1
    s_waitcnt lgkmcnt(0)
    s_barrier
    s_cbranch_scc1 L_fin
    ds_read_b128 v[32:35], v165 offset:{LY}
    ds_read_b128 v[36:39], v165 offset:{LY+256}
    s_waitcnt lgkmcnt(0)
    v_pk_add_f32 v[32:33], v[32:33], v[36:37]
    v_pk_add_f32 v[34:35], v[34:35], v[38:39]
    """)
    rs4(32)
    g(f"""
    v_bfi_b32 v32, s61, v167, v32
    s_mov_b32 s62, 0x11111111
    s_mov_b32 s63, 0x11111111
    v_mov_b32 v33, v32 quad_perm:[1,1,1,1] {DP}
    v_mov_b32 v34, v32 quad_perm:[2,2,2,2] {DP}
    v_mov_b32 v35, v32 quad_perm:[3,3,3,3] {DP}
    s_mov_b64 exec, s[62:63]
    global_store_dwordx4 v166, v[32:35], s[28:29] sc1
    s_branch L_fin
    """)
    g("L_att_ffn:")
    attention('ffn')
    g("s_waitcnt vmcnt(0)")
    for n in range(2):
        for p in range(2):
            a = 96 + 16 * n + 8 * p
            g(f"v_swap_b32 v{a+2}, v{a+4}")
            g(f"v_swap_b32 v{a+3}, v{a+5}")
    ts(6)
    poll("\n".join(f"global_load_dwordx4 v[{32+4*k}:{35+4*k}], v160, s[28:29] offset:{1024*k-4096} sc1" for k in range(8)),
         chk([(32 + i, 161) for i in range(32)], 8), "y")
    ts(7)
    for n in range(2):
        a = 32 + 16 * n
        g(f"""
        v_pk_add_f32 v[{a}:{a+1}], v[{a}:{a+1}], v[{a+4}:{a+5}]
        v_pk_add_f32 v[{a+2}:{a+3}], v[{a+2}:{a+3}], v[{a+6}:{a+7}]
        v_pk_add_f32 v[{a+8}:{a+9}], v[{a+8}:{a+9}], v[{a+12}:{a+13}]
        v_pk_add_f32 v[{a+10}:{a+11}], v[{a+10}:{a+11}], v[{a+14}:{a+15}]
        v_pk_add_f32 v[{a}:{a+1}], v[{a}:{a+1}], v[{a+8}:{a+9}]
        v_pk_add_f32 v[{a+2}:{a+3}], v[{a+2}:{a+3}], v[{a+10}:{a+11}]
        """)
    g(f"""
    v_permlane16_swap_b32 v32, v33
    v_permlane16_swap_b32 v34, v35
    v_permlane16_swap_b32 v48, v49
    v_permlane16_swap_b32 v50, v51
    v_add_f32 v32, v32, v33
    v_add_f32 v34, v34, v35
    v_add_f32 v48, v48, v49
    v_add_f32 v50, v50, v51
    v_permlane32_swap_b32 v32, v34
    v_permlane32_swap_b32 v48, v50
    v_add_f32 v32, v32, v34
    v_add_f32 v48, v48, v50
    v_cvt_pk_bf16_f32 v32, v32, v48
    v_and_b32 v33, s42, v32
    v_lshlrev_b32 v32, 16, v32
    v_pk_add_f32 v[20:21], v[20:21], v[32:33]
    v_cvt_pk_bf16_f32 v20, v20, v21
    v_and_b32 v21, s42, v20
    v_lshlrev_b32 v20, 16, v20
    ds_write_b64 v162, v[20:21] offset:{LH}
    s_waitcnt lgkmcnt(0)
    s_barrier
    ds_read_b32 v40, v169 offset:{LH}
    ds_read_b128 v[32:35], v163 offset:{LH}
    ds_read_b128 v[36:39], v163 offset:{LH+16}
    s_waitcnt lgkmcnt(0)
    """)
    for i in range(4):
        g(f"v_pk_add_f32 v[{32+2*i}:{33+2*i}], v[{32+2*i}:{33+2*i}], v[40:41] op_sel_hi:[1,0] neg_lo:[0,1] neg_hi:[0,1]")
    g(f"""
    v_pk_add_f32 v[42:43], v[32:33], v[34:35]
    v_pk_mul_f32 v[44:45], v[32:33], v[32:33]
    v_pk_add_f32 v[42:43], v[42:43], v[36:37]
    v_pk_fma_f32 v[44:45], v[34:35], v[34:35], v[44:45]
    v_pk_add_f32 v[42:43], v[42:43], v[38:39]
    v_pk_fma_f32 v[44:45], v[36:37], v[36:37], v[44:45]
    v_add_f32 v42, v42, v43
    v_pk_fma_f32 v[44:45], v[38:39], v[38:39], v[44:45]
    v_add_f32 v44, v44, v45
    v_permlane32_swap_b32 v42, v44
    v_add_f32 v42, v42, v44
    v_add_f32 v42, v42, v42 row_ror:8 {DP}
    v_add_f32 v42, v42, v42 row_ror:4 {DP}
    v_add_f32 v42, v42, v42 row_ror:2 {DP}
    v_add_f32 v42, v42, v42 row_ror:1 {DP}
    v_mov_b32 v43, v42
    v_permlane16_swap_b32 v42, v43
    v_add_f32 v42, v42, v43
    v_mul_f32 v42, 0x3b000000, v42
    v_mov_b32 v43, v42
    v_permlane32_swap_b32 v42, v43
    v_fma_f32 v43, -v42, v42, v43
    v_add_f32 v42, v42, v40
    v_max_f32 v43, 0, v43
    v_cvt_pk_bf16_f32 v42, v42, v43
    v_and_b32 v43, s42, v42
    v_lshlrev_b32 v42, 16, v42
    v_add_f32 v43, 0x3727c5ac, v43
    v_pk_add_f32 v[20:21], v[20:21], v[42:43] op_sel_hi:[1,0] neg_lo:[0,1] neg_hi:[0,1]
    v_cvt_pk_bf16_f32 v43, v43, v43
    v_and_b32 v43, s42, v43
    v_sqrt_f32 v43, v43
    v_cvt_pk_bf16_f32 v20, v20, v21
    v_cvt_pk_bf16_f32 v43, v43, v43
    v_and_b32 v43, s42, v43
    v_rcp_f32 v42, v43
    v_and_b32 v21, s42, v20
    v_lshlrev_b32 v20, 16, v20
    v_pk_mul_f32 v[20:21], v[20:21], v[42:43] op_sel_hi:[1,0]
    v_cvt_pk_bf16_f32 v20, v20, v20
    v_cvt_pk_bf16_f32 v21, v21, v21
    """)
    for k in range(5):
        if k < 4:
            n, p = k // 2, k % 2
            for r in range(4):
                t = 2 * p + r // 2
                g(f"v_and_b32 v{64+4*k+r}, v{20+n}, v{164+r%2} quad_perm:[{t},{t},{t},{t}] {DP}")
        if k >= 1:
            u = k - 1
            for hl in range(2):
                a = 96 + 8 * u + 4 * hl; d = 176 + 4 * hl
                g(f"{MF} v[{d}:{d+3}], v[{a}:{a+3}], v[{64+4*u}:{67+4*u}], {'0' if u == 0 else f'v[{d}:{d+3}]'}")
    g(f"""
    s_mov_b64 exec, s[58:59]
    ds_write_b128 v166, v[176:179] offset:{LP}
    ds_write_b128 v166, v[180:183] offset:{LP+64}
    s_mov_b64 exec, -1
    s_waitcnt lgkmcnt(0)
    s_barrier
    ds_read_b128 v[32:35], v10 offset:{LP}
    ds_read_b128 v[36:39], v10 offset:{LP+1024}
    s_waitcnt lgkmcnt(0)
    v_pk_add_f32 v[32:33], v[32:33], v[36:37]
    v_pk_add_f32 v[34:35], v[34:35], v[38:39]
    """)
    rs4(32)
    g(f"""
    v_add_f32 v32, v32, v32 row_ror:8 {DP}
    v_cvt_pk_bf16_f32 v32, v32, v32
    v_lshlrev_b32 v32, 16, v32
    v_add_f32 v32, v32, v22
    v_cvt_pk_bf16_f32 v32, v32, v32
    v_lshlrev_b32 v32, 16, v32
    v_max_f32 v32, 0, v32
    v_mul_f32 v32, v32, v32
    v_cvt_pk_bf16_f32 v32, v32, v32
    """)
    for k in range(5):
        if k < 4:
            for r in range(4):
                g(f"v_and_b32 v{64+4*k+r}, v32, v{4+r} quad_perm:[{k},{k},{k},{k}] {DP}")
        if k >= 1:
            u = k - 1
            for n in range(2):
                a = 128 + 16 * n + 4 * u; d = 176 + 4 * n
                g(f"{MF} v[{d}:{d+3}], v[{a}:{a+3}], v[{64+4*u}:{67+4*u}], {'0' if u == 0 else f'v[{d}:{d+3}]'}")
    for r in range(4): g(f"v_permlane32_swap_b32 v{176+r}, v{180+r}")
    for r in range(4): g(f"v_add_f32 v{176+r}, v{180+r}, v{176+r} row_shl:4 {DP}")
    for r in range(4): g(f"v_bfi_b32 v{176+r}, s61, v168, v{176+r}")
    g("""
    s_mov_b64 exec, s[40:41]
    global_store_dwordx4 v167, v[176:179], s[28:29] sc1
    L_fin:
    """)
    ts(8)
    ts_end()
    g("L_end:\ns_endpgm")
    for t in tail: g(t)
    body, nn = pad(L)
    ref = open(os.path.join(os.path.dirname(__file__), "..", "cdna_kernels", NAME + ".s.ref")).read().split("\n")
    hdr = [l for l in ref if l.startswith(";") and "@launch" not in l]
    out = hdr + [f"; @launch grid=(256,1,1) block=(320,1,1) lds={LDS}",
                 '.amdgcn_target "amdgcn-amd-amdhsa--gfx950"', ".text", f".globl {NAME}_kernel", ".p2align 8",
                 f".type {NAME}_kernel,@function", f"{NAME}_kernel:"]
    out += [("" if l.endswith(":") else "    ") + l for l in body]
    out += ['.section .rodata,"a"', ".p2align 6", f".amdhsa_kernel {NAME}_kernel",
            "  .amdhsa_next_free_vgpr 192", "  .amdhsa_next_free_sgpr 102", "  .amdhsa_accum_offset 192",
            "  .amdhsa_group_segment_fixed_size 0", "  .amdhsa_kernarg_size 104", "  .amdhsa_user_sgpr_count 2",
            "  .amdhsa_user_sgpr_kernarg_segment_ptr 1", "  .amdhsa_system_sgpr_workgroup_id_x 1",
            "  .amdhsa_float_denorm_mode_32 3", ".end_amdhsa_kernel", ""]
    return "\n".join(out)

if __name__ == "__main__":
    kw = {}
    outp = sys.argv[1]
    for a in sys.argv[2:]:
        k, v = a.split("=")
        kw[k] = int(v) if v.lstrip('-').isdigit() else v
    open(outp, "w").write(gen(**kw))
```

```python
import sys, os
sys.path.insert(0, os.path.dirname(__file__))
from hz import pad
NAME = "sequential_preLN__sliding_block_cached__dense_activation_squared_relu__decode"

DEF = dict(ts=0, nt="nt", thr=8, wpos=1, spin=200000, ffn_early=0, prio=1, qwait=1, pad=0, amp=0)
def gen(**kw):
    O = dict(DEF); O.update(kw)
    NT = O['nt'].replace('+', ' ') if O['nt'] != '-' else ''
    THR = O['thr']
    L = []
    tail = []
    def g(s):
        for l in s.strip('\n').split('\n'):
            if l.strip(): L.append(l.strip())
    QP, OP, ML, YP, FP, TSB = 0x10000, 0x30000, 0x50000, 0x60000, 0x70000, 0x100000
    LQ, LM, LO, LY, LH, LP = 0, 256, 512, 2560, 4608, 6656
    LDS = 8704
    nts = [0]
    def ts(i):
        if O['ts']: g(f"s_memrealtime s[{64+2*i}:{65+2*i}]")
    def ts_end():
        if not O['ts']: return
        g(f"""
        s_waitcnt lgkmcnt(0)
        s_mov_b64 exec, 1
        s_lshl_b32 s60, s2, 3
        s_add_u32 s60, s60, s3
        s_lshl_b32 s60, s60, 7
        s_add_u32 s60, s60, {TSB}
        v_mov_b32 v8, s60
        """)
        for i in range(16):
            g(f"v_mov_b32 v9, s{64+2*i}")
            g(f"global_store_dword v8, v9, s[28:29] offset:{4*i}")
    cnt = [0]
    def poll(loads, check, name):
        cnt[0] += 1; n = f"{name}{cnt[0]}"
        g(f"s_mov_b32 s36, {O['spin']}")
        g(f"L_{n}:")
        g(loads); g("s_waitcnt vmcnt(0)"); g(check)
        g(f"s_cbranch_vccnz L_{n}_r")
        g(f"L_{n}_d:")
        tail.append(f"L_{n}_r:\ns_sub_u32 s36, s36, 1\ns_cbranch_scc0 L_{n}\ns_branch L_{n}_d")
    def chk(regtags, acc):
        s = []
        rs = [r for r, t in regtags]
        for r, t in regtags: s.append(f"v_xor_b32 v{r}, v{r}, v{t}")
        s.append(f"v_or3_b32 v{acc}, v{rs[0]}, v{rs[1]}, v{rs[2]}")
        k = 3
        while k + 1 < len(rs):
            s.append(f"v_or3_b32 v{acc}, v{acc}, v{rs[k]}, v{rs[k+1]}"); k += 2
        if k < len(rs): s.append(f"v_or_b32 v{acc}, v{acc}, v{rs[k]}")
        s.append(f"v_and_b32 v{acc}, s61, v{acc}")
        s.append(f"v_cmp_ne_u32 vcc, 0, v{acc}")
        return "\n".join(s)
    def xrow(op, r, t, rors=(8, 4, 2, 1)):
        for k in rors: g(f"{op} v{r}, v{r}, v{r} row_ror:{k} row_mask:0xf bank_mask:0xf")
        for sw in (16, 32):
            g(f"v_mov_b32 v{t}, v{r}")
            g(f"v_permlane{sw}_swap_b32 v{r}, v{t}")
            g(f"{op} v{r}, v{r}, v{t}")
    def rs4(a):
        g(f"""
        v_permlane16_swap_b32 v{a}, v{a+1}
        v_permlane16_swap_b32 v{a+2}, v{a+3}
        v_add_f32 v{a}, v{a}, v{a+1}
        v_add_f32 v{a+2}, v{a+2}, v{a+3}
        v_permlane32_swap_b32 v{a}, v{a+2}
        v_add_f32 v{a}, v{a}, v{a+2}
        """)
    def masks():
        g("""
        v_and_b32 v8, 1, v0
        v_lshlrev_b32 v8, 4, v8
        v_mov_b32 v9, 0xffff
        v_lshlrev_b32 v9, v8, v9
        v_and_b32 v3, 3, v0
        v_lshrrev_b32 v8, 1, v0
        v_and_or_b32 v3, v8, 4, v3
        v_lshrrev_b32 v8, 1, v3
        v_cmp_eq_u32 vcc, 0, v8
        v_cndmask_b32 v4, 0, v9, vcc
        v_cmp_eq_u32 vcc, 1, v8
        v_cndmask_b32 v5, 0, v9, vcc
        v_cmp_eq_u32 vcc, 2, v8
        v_cndmask_b32 v6, 0, v9, vcc
        v_cmp_eq_u32 vcc, 3, v8
        v_cndmask_b32 v7, 0, v9, vcc
        """)
    MF = "v_mfma_f32_16x16x32_bf16"
    DP = "row_mask:0xf bank_mask:0xf"
    ts(0)
    if O['pad']: g("s_memrealtime s[96:97]")
    g("""
    s_cmp_ge_u32 s2, 256
    s_cbranch_scc1 L_end
    s_load_dwordx16 s[4:19], s[0:1], 0
    s_load_dwordx8 s[20:27], s[0:1], 64
    s_load_dwordx2 s[28:29], s[0:1], 96
    v_lshrrev_b32 v1, 6, v0
    v_and_b32 v0, 63, v0
    v_readfirstlane_b32 s3, v1
    v_lshrrev_b32 v1, 4, v0
    v_and_b32 v2, 15, v0
    s_and_b32 s32, s2, 7
    s_lshr_b32 s33, s2, 3
    s_and_b32 s30, s33, 3
    s_lshl_b32 s35, s32, 2
    s_add_u32 s30, s30, s35
    s_lshr_b32 s31, s33, 2
    s_mov_b32 s40, 0x0f0f0f0f
    s_mov_b32 s41, 0x0f0f0f0f
    s_mov_b32 s42, 0xffff0000
    s_mov_b32 s43, 0x3fb8aa3b
    s_movk_i32 s61, 0xff
    s_cmp_lg_u32 s3, 0
    s_cbranch_scc1 L_comp
    """)
    if O['prio']: g("s_setprio 3")
    g(f"""
    v_lshlrev_b32 v10, 4, v0
    s_lshl_b32 s35, s31, 7
    v_lshl_add_u32 v11, v0, 1, s35
    v_mov_b32 v24, 0
    v_lshlrev_b32 v25, 17, v1
    v_lshl_add_u32 v25, v2, 4, v25
    s_lshl_b32 s35, s31, 19
    s_lshl_b32 s37, s30, 8
    s_add_u32 s35, s35, s37
    s_waitcnt lgkmcnt(0)
    s_load_dword s34, s[28:29], 0
    global_load_dwordx4 v[12:15], v10, s[4:5]
    global_load_short_d16_hi v24, v11, s[4:5]
    s_add_u32 s10, s10, s35
    s_addc_u32 s11, s11, 0
    """)
    for t in range(16):
        g(f"global_load_dwordx4 v[{32+4*t}:{35+4*t}], v25, s[10:11] {NT}")
        if t < 15: g("v_add_u32 v25, 0x2000, v25")
    ts(1)
    masks()
    g(f"""
    s_lshl_b32 s35, s30, 12
    s_add_u32 s35, s35, {QP}
    s_add_u32 s44, s28, s35
    s_addc_u32 s45, s29, 0
    s_lshl_b32 s35, s31, 9
    v_lshl_add_u32 v26, v1, 3, v3
    v_lshl_add_u32 v27, v26, 4, s35
    s_waitcnt vmcnt(16)
    """)
    ts(2)
    for i in range(4):
        g(f"v_lshlrev_b32 v{16+2*i}, 16, v{12+i}")
        g(f"v_and_b32 v{17+2*i}, s42, v{12+i}")
    g("""
    v_pk_add_f32 v[8:9], v[16:17], v[18:19]
    v_pk_add_f32 v[12:13], v[20:21], v[22:23]
    v_pk_add_f32 v[8:9], v[8:9], v[12:13]
    v_add_f32 v8, v8, v9
    """)
    xrow("v_add_f32", 8, 9)
    g("v_mul_f32 v8, 0x3b000000, v8")
    for i in range(4):
        g(f"v_pk_add_f32 v[{16+2*i}:{17+2*i}], v[{16+2*i}:{17+2*i}], v[8:9] op_sel_hi:[1,0] neg_lo:[0,1] neg_hi:[0,1]")
    g("""
    v_pk_mul_f32 v[12:13], v[16:17], v[16:17]
    v_pk_fma_f32 v[12:13], v[18:19], v[18:19], v[12:13]
    v_pk_fma_f32 v[12:13], v[20:21], v[20:21], v[12:13]
    v_pk_fma_f32 v[12:13], v[22:23], v[22:23], v[12:13]
    v_add_f32 v12, v12, v13
    """)
    xrow("v_add_f32", 12, 13)
    g("""
    v_mul_f32 v12, 0x3b000000, v12
    v_cvt_pk_bf16_f32 v8, v8, v12
    v_and_b32 v12, s42, v8
    v_lshlrev_b32 v8, 16, v8
    v_add_f32 v12, 0x3727c5ac, v12
    v_sub_f32 v24, v24, v8
    v_cvt_pk_bf16_f32 v12, v12, v24
    v_and_b32 v24, s42, v12
    v_lshlrev_b32 v12, 16, v12
    v_sqrt_f32 v12, v12
    v_cvt_pk_bf16_f32 v12, v12, v12
    v_lshlrev_b32 v12, 16, v12
    v_rcp_f32 v12, v12
    v_mul_f32 v24, v24, v12
    v_cvt_pk_bf16_f32 v24, v24, v24
    """)
    for t in range(16):
        for r in range(4):
            g(f"v_and_b32 v{96+4*t+r}, v24, v{4+r} row_newbcast:{t} {DP}")
        if t >= 1:
            u = t - 1
            g(f"s_waitcnt vmcnt({15-u})")
            g(f"{MF} v[160:163], v[{32+4*u}:{35+4*u}], v[{96+4*u}:{99+4*u}], {'0' if u == 0 else 'v[160:163]'}")
    g(f"""
    s_waitcnt vmcnt(0) lgkmcnt(0)
    {MF} v[160:163], v[92:95], v[156:159], v[160:163]
    s_add_u32 s34, s34, 1
    v_add_u32 v26, s34, v26
    v_and_b32 v28, 31, v0
    v_add_u32 v28, s34, v28
    v_and_b32 v28, s61, v28
    s_mov_b64 exec, s[40:41]
    """)
    for r in range(4): g(f"v_add_u32 v{160+r}, 0x80, v{160+r}")
    for r in range(4): g(f"v_bfi_b32 v{160+r}, s61, v26, v{160+r}")
    g("global_store_dwordx4 v27, v[160:163], s[44:45] sc1")
    g("s_mov_b64 exec, -1")
    ts(3)
    g(f"""
    v_bfe_u32 v8, v0, 3, 2
    v_lshlrev_b32 v8, 6, v8
    v_lshrrev_b32 v9, 5, v0
    v_lshl_add_u32 v8, v9, 5, v8
    v_and_b32 v9, 7, v0
    v_lshl_add_u32 v29, v9, 1, v8
    """)
    if O['qwait']: g("s_waitcnt vmcnt(0)")
    ts(4)
    poll("\n".join(f"global_load_dwordx4 v[{164+4*u}:{167+4*u}], v10, s[44:45] offset:{1024*u} sc1" for u in range(4)),
         chk([(164 + i, 28) for i in range(16)], 8), "q")
    ts(5)
    g(f"""
    v_pk_add_f32 v[164:165], v[164:165], v[168:169]
    v_pk_add_f32 v[166:167], v[166:167], v[170:171]
    v_pk_add_f32 v[172:173], v[172:173], v[176:177]
    v_pk_add_f32 v[174:175], v[174:175], v[178:179]
    v_pk_add_f32 v[164:165], v[164:165], v[172:173]
    v_pk_add_f32 v[166:167], v[166:167], v[174:175]
    v_permlane32_swap_b32 v164, v166
    v_permlane32_swap_b32 v165, v167
    v_pk_add_f32 v[164:165], v[164:165], v[166:167]
    v_cvt_pk_bf16_f32 v164, v164, v165
    ds_write_b16 v29, v164 offset:{LQ}
    ds_write_b16_d16_hi v29, v164 offset:{LQ+16}
    s_waitcnt lgkmcnt(0)
    s_barrier
    s_lshl_b32 s35, s30, 7
    s_lshl_b32 s37, s31, 4
    s_add_u32 s35, s35, s37
    s_add_u32 s35, s35, {ML}
    v_mov_b32 v27, s35
    v_and_b32 v8, 3, v0
    v_lshlrev_b32 v8, 3, v8
    v_mov_b32 v13, s34
    v_mov_b32 v15, s34
    s_barrier
    ds_read_b64 v[10:11], v8 offset:{LM}
    s_waitcnt lgkmcnt(0)
    v_max_f32 v12, v10, v10 quad_perm:[1,0,3,2] {DP}
    v_max_f32 v12, v12, v12 quad_perm:[2,3,0,1] {DP}
    v_sub_f32 v10, v10, v12
    v_mul_f32 v10, s43, v10
    v_exp_f32 v10, v10
    v_mul_f32 v14, v10, v11
    v_add_f32 v14, v14, v14 quad_perm:[1,0,3,2] {DP}
    v_add_f32 v14, v14, v14 quad_perm:[2,3,0,1] {DP}
    s_mov_b64 exec, 1
    global_store_dwordx4 v27, v[12:15], s[28:29] sc1
    """)
    ts(6)
    ts_end()
    g("s_endpgm")
    g(f"""
    L_comp:
    s_sub_u32 s38, s3, 1
    v_lshrrev_b32 v8, 2, v2
    v_lshlrev_b32 v8, 8, v8
    v_lshl_add_u32 v8, v1, 6, v8
    v_and_b32 v9, 3, v0
    v_lshl_add_u32 v11, v9, 4, v8
    v_lshlrev_b32 v10, 4, v0
    s_lshl_b32 s35, s30, 20
    s_lshl_b32 s37, s31, 15
    s_add_u32 s35, s35, s37
    s_lshl_b32 s37, s38, 13
    s_add_u32 s35, s35, s37
    s_add_u32 s35, s35, {786432+4096}
    s_waitcnt lgkmcnt(0)
    s_load_dword s34, s[28:29], 0
    s_add_u32 s6, s6, s35
    s_addc_u32 s7, s7, 0
    s_add_u32 s8, s8, s35
    s_addc_u32 s9, s9, 0
    """)
    nl = 0
    for t in range(8):
        if nl >= THR: g(f"s_waitcnt vmcnt({THR-1})")
        g(f"global_load_dwordx4 v[{32+4*t}:{35+4*t}], v11, s[6:7] offset:{1024*t-4096} {NT}"); nl += 1
    ts(1)
    masks()
    for r in range(160, 176): g(f"v_mov_b32 v{r}, 0")
    g(f"""
    v_lshlrev_b32 v12, 6, v1
    v_and_b32 v9, 3, v0
    v_lshl_add_u32 v12, v9, 4, v12
    s_lshl_b32 s35, s38, 3
    v_mov_b32 v13, s35
    v_lshl_add_u32 v14, v1, 3, v3
    s_lshl_b32 s35, s38, 9
    v_lshl_add_u32 v14, v14, 4, s35
    s_mov_b32 s62, 0x55555555
    s_mov_b32 s63, 0x55555555
    s_mov_b32 s46, 0x000f000f
    s_mov_b32 s47, 0x000f000f
    s_lshl_b64 s[48:49], s[46:47], 4
    s_lshl_b64 s[50:51], s[46:47], 8
    s_lshl_b64 s[52:53], s[46:47], 12
    s_cmp_lt_u32 s33, 16
    s_cbranch_scc1 L_att_wo
    s_sub_u32 s39, s2, 128
    s_cmp_lt_u32 s39, 43
    s_cbranch_scc1 L_att_ffn
    """)

    def w_setup(role):
        if role == 'wo':
            g(f"""
            s_and_b32 s54, s33, 1
            s_lshl_b32 s35, s32, 1
            s_add_u32 s56, s54, s35
            s_lshl_b32 s54, s56, 1
            s_lshr_b32 s35, s38, 1
            s_add_u32 s54, s54, s35
            s_lshr_b32 s55, s33, 1
            s_lshl_b32 s35, s54, 17
            s_and_b32 s37, s38, 1
            s_lshl_b32 s37, s37, 14
            s_add_u32 s35, s35, s37
            s_lshl_b32 s37, s55, 7
            s_add_u32 s35, s35, s37
            s_add_u32 s35, s35, 4096
            s_add_u32 s12, s12, s35
            s_addc_u32 s13, s13, 0
            v_lshrrev_b32 v8, 3, v2
            v_lshlrev_b32 v8, 5, v8
            v_and_b32 v9, 1, v1
            v_lshl_add_u32 v8, v9, 3, v8
            v_lshrrev_b32 v9, 1, v1
            v_add_u32 v8, v8, v9
            v_lshlrev_b32 v8, 10, v8
            v_and_b32 v9, 7, v0
            v_lshl_add_u32 v16, v9, 4, v8
            v_add_u32 v17, 0x10000, v16
            """)
        if role == 'ffn':
            g(f"""
            s_mul_i32 s35, s38, {128*2752}
            s_lshl_b32 s37, s39, 6
            s_add_u32 s35, s35, s37
            s_add_u32 s16, s16, s35
            s_addc_u32 s17, s17, 0
            s_lshl_b32 s35, s39, 15
            s_lshl_b32 s37, s38, 8
            s_add_u32 s35, s35, s37
            s_add_u32 s20, s20, s35
            s_addc_u32 s21, s21, 0
            v_lshrrev_b32 v8, 2, v2
            v_lshl_add_u32 v18, v8, 3, v1
            v_mul_u32_u24 v8, 2752, v18
            v_and_b32 v9, 3, v0
            v_lshl_add_u32 v16, v9, 4, v8
            v_lshrrev_b32 v8, 3, v2
            v_lshl_add_u32 v8, v1, 1, v8
            v_lshlrev_b32 v8, 12, v8
            v_and_b32 v9, 7, v0
            v_lshl_add_u32 v17, v9, 4, v8
            v_lshl_add_u32 v19, v1, 3, v9
            s_lshl_b32 s35, s39, 6
            v_lshl_add_u32 v19, v19, 1, s35
            v_and_b32 v8, 1, v0
            v_lshl_add_u32 v18, v8, 2, v18
            v_bfe_u32 v8, v0, 1, 1
            v_lshl_add_u32 v18, v8, 5, v18
            s_lshl_b32 s35, s38, 8
            v_lshl_add_u32 v18, v18, 1, s35
            v_mov_b32 v20, 0
            v_mov_b32 v21, 0
            v_mov_b32 v22, 0
            """)
    def w_loads(role, part):
        out = []
        if role == 'wo' and part == 0:
            for n in range(2):
                for t in range(4):
                    r = 96 + 16 * n + 4 * t
                    out.append(f"global_load_dwordx4 v[{r}:{r+3}], v{16+n}, s[12:13] offset:{2048*t-4096} {NT}")
        if role == 'ffn' and part == 0:
            for n in range(2):
                for t in range(4):
                    r = 96 + 16 * n + 4 * t
                    off = (64 * n + 32 * (t // 2) + 4 * (t % 2)) * 2752
                    out.append(f"v_add_u32 v23, {off}, v16\nglobal_load_dwordx4 v[{r}:{r+3}], v23, s[16:17] {NT}")
        if role == 'ffn' and part == 1:
            out.append("global_load_short_d16_hi v20, v18, s[4:5]")
            out.append("global_load_short_d16_hi v21, v18, s[4:5] offset:128")
            out.append("global_load_short_d16_hi v22, v19, s[18:19]")
            for n in range(2):
                for t in range(4):
                    r = 128 + 16 * n + 4 * t
                    out.append(f"global_load_dwordx4 v[{r}:{r+3}], v17, s[20:21] offset:{1024*t+128*n} {NT}")
        return out

    def attention(role):
        w_setup(role)
        thr = THR
        for t in range(8):
            if 8 + t >= thr: g(f"s_waitcnt vmcnt({thr-1})")
            g(f"global_load_dwordx4 v[{64+4*t}:{67+4*t}], v10, s[8:9] offset:{1024*t-4096} {NT}")
        after = 0
        W = w_loads(role, 0) + w_loads(role, 1)
        early = O['ffn_early'] if role == 'ffn' else 0
        for x in W[:early]: g(x); after += 1
        W = W[early:]
        ts(2)
        g("s_barrier")
        ts(3)
        for u in range(4):
            g(f"s_mov_b64 exec, s[{46+2*u}:{47+2*u}]")
            g(f"ds_read_b128 v[{160+4*u}:{163+4*u}], v12 offset:{LQ}")
        g("s_mov_b64 exec, -1")
        if O['wpos'] == 0:
            for x in W: g(x); after += 1
            W = []
        g(f"s_waitcnt vmcnt({8+after}) lgkmcnt(0)")
        for u in range(4):
            for c in range(2):
                t = 4 * c + u
                g(f"{MF} v[{176+4*c}:{179+4*c}], v[{32+4*t}:{35+4*t}], v[{160+4*u}:{163+4*u}], {'0' if u == 0 else f'v[{176+4*c}:{179+4*c}]'}")
        g("s_add_u32 s34, s34, 1")
        if O['wpos'] == 1:
            for x in W: g(x); after += 1
            W = []
        for c in range(2):
            g(f"v_mov_b32 v{24+c}, v{176+4*c} quad_perm:[0,0,0,0] {DP}")
        for r in range(1, 4):
            for c in range(2):
                g(f"v_add_f32 v{24+c}, v{176+4*c+r}, v{24+c} quad_perm:[{r},{r},{r},{r}] {DP}")
        g(f"""
        v_cvt_pk_bf16_f32 v24, v24, v25
        v_and_b32 v25, s42, v24
        v_lshlrev_b32 v24, 16, v24
        v_mul_f32 v24, 0x3db504f3, v24
        v_mul_f32 v25, 0x3db504f3, v25
        v_cvt_pk_bf16_f32 v24, v24, v25
        v_and_b32 v25, s42, v24
        v_lshlrev_b32 v24, 16, v24
        v_max_f32 v26, v24, v25
        """)
        xrow("v_max_f32", 26, 27, (4, 8))
        g("""
        v_sub_f32 v28, v24, v26
        v_sub_f32 v29, v25, v26
        v_mul_f32 v28, s43, v28
        v_mul_f32 v29, s43, v29
        v_exp_f32 v28, v28
        v_exp_f32 v29, v29
        v_add_f32 v27, v28, v29
        """)
        xrow("v_add_f32", 27, 28, (4, 8))
        g(f"""
        s_mov_b64 exec, 1
        ds_write_b64 v13, v[26:27] offset:{LM}
        s_mov_b64 exec, -1
        v_and_b32 v8, 3, v0
        v_lshlrev_b32 v8, 3, v8
        s_waitcnt lgkmcnt(0)
        s_barrier
        ds_read_b32 v26, v8 offset:{LM}
        s_waitcnt lgkmcnt(0)
        v_max_f32 v26, v26, v26 quad_perm:[1,0,3,2] {DP}
        v_max_f32 v26, v26, v26 quad_perm:[2,3,0,1] {DP}
        v_sub_f32 v28, v24, v26
        v_sub_f32 v29, v25, v26
        v_mul_f32 v28, s43, v28
        v_mul_f32 v29, s43, v29
        v_exp_f32 v28, v28
        v_exp_f32 v29, v29
        v_cvt_pk_bf16_f32 v28, v28, v28
        v_cvt_pk_bf16_f32 v29, v29, v29
        """)
        for t in range(8):
            for r in range(4):
                g(f"v_and_b32 v{32+4*t+r}, v{28+t//4}, v{4+r} row_newbcast:{4*(t%4)} {DP}")
        for x in W: g(x); after += 1
        ts(4)
        g(f"""
        s_lshl_b32 s35, s30, 12
        s_lshl_b32 s37, s31, 9
        s_add_u32 s35, s35, s37
        s_add_u32 s35, s35, {OP}
        v_lshl_add_u32 v24, v0, 3, s35
        v_lshrrev_b32 v25, 1, v0
        v_add_u32 v25, s34, v25
        v_and_b32 v26, 31, v0
        v_lshrrev_b32 v27, 5, v0
        v_lshlrev_b32 v27, 10, v27
        v_lshl_add_u32 v26, v26, 4, v27
        """)
        pre(role)
        for t in range(8):
            g(f"s_waitcnt vmcnt({7-t+after})")
            g(f"{MF} v[184:187], v[{64+4*t}:{67+4*t}], v[{32+4*t}:{35+4*t}], {'0' if t == 0 else 'v[184:187]'}")
        g(f"""
        s_mov_b64 exec, s[40:41]
        s_cmp_lg_u32 s38, 0
        ds_write_b128 v14, v[184:187] offset:{LO}
        s_mov_b64 exec, -1
        s_waitcnt lgkmcnt(0)
        s_barrier
        s_cbranch_scc1 L_nopub_{role}
        ds_read_b128 v[32:35], v26 offset:{LO}
        ds_read_b128 v[36:39], v26 offset:{LO+512}
        s_waitcnt lgkmcnt(0)
        v_pk_add_f32 v[32:33], v[32:33], v[36:37]
        v_pk_add_f32 v[34:35], v[34:35], v[38:39]
        v_permlane32_swap_b32 v32, v34
        v_permlane32_swap_b32 v33, v35
        v_pk_add_f32 v[32:33], v[32:33], v[34:35]
        v_bfi_b32 v32, s61, v25, v32
        v_bfi_b32 v33, s61, v25, v33
        v_mov_b32 v34, v32 quad_perm:[1,1,3,3] {DP}
        v_mov_b32 v35, v33 quad_perm:[1,1,3,3] {DP}
        s_mov_b64 exec, s[62:63]
        global_store_dwordx4 v24, v[32:35], s[28:29] sc1
        s_mov_b64 exec, -1
        L_nopub_{role}:
        """)
        ts(5)

    def pre(role):
        if role == 'wo':
            g(f"""
            s_lshl_b32 s35, s54, 7
            s_add_u32 s35, s35, {ML}
            v_lshrrev_b32 v8, 3, v0
            v_lshl_add_u32 v160, v8, 4, s35
            s_lshl_b32 s35, s54, 12
            s_and_b32 s37, s38, 1
            s_lshl_b32 s37, s37, 8
            s_add_u32 s35, s35, s37
            s_add_u32 s35, s35, {OP}
            v_lshl_add_u32 v8, v8, 9, s35
            v_and_b32 v9, 7, v0
            v_lshl_add_u32 v161, v9, 4, v8
            s_lshr_b32 s37, s37, 4
            s_add_u32 s37, s37, s34
            v_add_u32 v9, s37, v9
            v_and_b32 v162, s61, v9
            v_add_u32 v9, 8, v9
            v_and_b32 v163, s61, v9
            v_lshrrev_b32 v8, 1, v1
            s_lshl_b32 s35, s38, 9
            v_lshl_add_u32 v8, v8, 8, s35
            v_and_b32 v9, 1, v1
            v_lshl_add_u32 v9, v9, 3, v3
            v_lshl_add_u32 v164, v9, 4, v8
            v_lshlrev_b32 v8, 9, v1
            v_lshl_add_u32 v165, v2, 4, v8
            s_lshl_b32 s35, s55, 12
            s_lshl_b32 s37, s56, 8
            s_add_u32 s35, s35, s37
            s_add_u32 s35, s35, {YP}
            v_lshl_add_u32 v166, v0, 2, s35
            v_lshrrev_b32 v8, 2, v0
            v_add_u32 v167, s34, v8
            s_mov_b32 s58, 0x0f0f0f0f
            s_mov_b32 s59, 0xf0f0f0f0
            """)
        if role == 'ffn':
            g(f"""
            s_lshl_b32 s35, s38, 13
            s_add_u32 s35, s35, {YP+4096}
            v_add_u32 v160, s35, v10
            v_add_u32 v8, s34, v2
            v_and_b32 v161, s61, v8
            s_lshl_b32 s35, s38, 9
            v_lshl_add_u32 v162, v0, 3, s35
            v_lshlrev_b32 v163, 5, v0
            v_or_b32 v164, v4, v6
            v_or_b32 v165, v5, v7
            v_lshl_add_u32 v8, v1, 7, s35
            v_and_b32 v9, 3, v0
            v_lshl_add_u32 v166, v9, 4, v8
            s_mul_i32 s35, s38, {4*6144}
            s_lshl_b32 s37, s39, 7
            s_add_u32 s35, s35, s37
            s_add_u32 s35, s35, {FP}
            v_mul_u32_u24 v8, 6144, v1
            v_lshl_add_u32 v8, v3, 4, v8
            v_add_u32 v167, s35, v8
            v_add_u32 v168, s34, v3
            v_mov_b32 v169, 0
            s_mov_b32 s58, 0x00f0000f
            s_mov_b32 s59, 0xf0000f00
            """)

    attention('pl')
    g(f"""
    s_sub_u32 s39, s2, 192
    s_cmp_lt_u32 s39, 32
    s_cselect_b32 s35, 1, 99
    s_cmp_eq_u32 s38, s35
    s_cbranch_scc0 L_fin
    """)
    g(f"""
    s_lshr_b32 s54, s39, 1
    s_and_b32 s55, s39, 1
    v_and_b32 v9, 3, v0
    s_lshl_b32 s35, s54, 5
    s_lshl_b32 s37, s55, 2
    s_add_u32 s35, s35, s37
    v_lshl_add_u32 v8, v1, 3, v9
    v_add_u32 v8, s35, v8
    v_lshlrev_b32 v16, 1, v8
    v_mov_b32 v20, 0
    v_mov_b32 v21, 0
    global_load_short_d16_hi v20, v16, s[4:5]
    global_load_short_d16_hi v21, v16, s[22:23]
    s_lshr_b32 s35, s54, 1
    s_lshl_b32 s35, s35, 12
    s_and_b32 s37, s39, 3
    s_lshl_b32 s57, s37, 4
    s_add_u32 s35, s35, s57
    s_add_u32 s35, s35, {YP}
    v_lshrrev_b32 v8, 2, v2
    v_lshl_add_u32 v8, v8, 8, s35
    v_lshl_add_u32 v8, v1, 6, v8
    v_lshl_add_u32 v17, v9, 2, v8
    s_add_u32 s37, s37, s34
    v_lshl_add_u32 v8, v1, 2, s37
    v_and_b32 v18, s61, v8
    s_mul_i32 s35, s54, 6144
    s_lshl_b32 s37, s55, 6
    s_add_u32 s35, s35, s37
    s_add_u32 s35, s35, {FP+2048}
    v_lshrrev_b32 v8, 2, v0
    v_lshl_add_u32 v8, v8, 7, s35
    v_lshl_add_u32 v19, v9, 4, v8
    s_lshl_b32 s37, s55, 2
    s_add_u32 s37, s37, s34
    v_add_u32 v8, s37, v9
    v_and_b32 v22, s61, v8
    s_mov_b32 s58, -1
    s_mov_b32 s59, 0xfff
    """)
    poll("\n".join(f"global_load_dword v{32+u}, v17, s[28:29] offset:{1024*u} sc1" for u in range(4)),
         chk([(32 + i, 18) for i in range(4)], 8), "rh")
    g(f"""
    v_add_f32 v32, v32, v33
    v_add_f32 v34, v34, v35
    v_add_f32 v32, v32, v34
    v_add_f32 v32, v32, v32 row_ror:4 {DP}
    v_add_f32 v32, v32, v32 row_ror:8 {DP}
    v_cvt_pk_bf16_f32 v32, v32, v32
    v_lshlrev_b32 v32, 16, v32
    v_add_f32 v20, v20, v32
    v_cvt_pk_bf16_f32 v20, v20, v20
    v_and_b32 v20, s42, v20
    """)
    ts(6)
    poll("""
    v_mov_b32 v40, v22
    v_mov_b32 v41, v22
    v_mov_b32 v42, v22
    v_mov_b32 v43, v22
    global_load_dwordx4 v[32:35], v19, s[28:29] offset:-2048 sc1
    global_load_dwordx4 v[36:39], v19, s[28:29] sc1
    s_mov_b64 exec, s[58:59]
    global_load_dwordx4 v[40:43], v19, s[28:29] offset:2048 sc1
    s_mov_b64 exec, -1
    """, chk([(32 + i, 22) for i in range(12)], 8), "rf")
    ts(7)
    g(f"""
    v_pk_add_f32 v[32:33], v[32:33], v[36:37]
    v_pk_add_f32 v[34:35], v[34:35], v[38:39]
    v_pk_add_f32 v[32:33], v[32:33], v[40:41]
    v_pk_add_f32 v[34:35], v[34:35], v[42:43]
    """)
    rs4(32)
    g(f"""
    v_add_f32 v32, v32, v32 row_ror:4 {DP}
    v_add_f32 v32, v32, v32 row_ror:8 {DP}
    v_cvt_pk_bf16_f32 v32, v32, v32
    v_lshlrev_b32 v32, 16, v32
    v_add_f32 v32, v32, v21
    v_cvt_pk_bf16_f32 v32, v32, v32
    v_lshlrev_b32 v32, 16, v32
    v_add_f32 v32, v32, v20
    v_cvt_pk_bf16_f32 v32, v32, v32
    s_mov_b64 exec, s[46:47]
    global_store_short v16, v32, s[24:25]
    s_cmp_lg_u32 s39, 0
    s_cbranch_scc1 L_fin
    s_mov_b64 exec, 1
    v_mov_b32 v8, 0
    v_mov_b32 v9, s34
    global_store_dword v8, v9, s[28:29]
    """)
    if O['pad']:
        g(f"""
        s_memrealtime s[98:99]
        s_waitcnt lgkmcnt(0)
        s_sub_u32 s98, s98, s96
        s_mul_i32 s98, s98, {O['amp']}
        s_add_u32 s96, s96, s98
        s_add_u32 s96, s96, {O['pad']}
        L_pad:
        s_memrealtime s[98:99]
        s_waitcnt lgkmcnt(0)
        s_sub_u32 s98, s98, s96
        s_cmp_lt_i32 s98, 0
        s_cbranch_scc1 L_pad
        """)
    g("s_branch L_fin")
    g("L_att_wo:")
    attention('wo')
    poll("global_load_dwordx4 v[40:43], v160, s[28:29] sc1",
         "v_xor_b32 v41, s34, v41\nv_xor_b32 v43, s34, v43\nv_or_b32 v41, v41, v43\nv_cmp_ne_u32 vcc, 0, v41", "ml")
    g("v_mov_b32 v44, v40")
    xrow("v_max_f32", 44, 45, (8,))
    g("""
    v_sub_f32 v40, v40, v44
    v_mul_f32 v40, s43, v40
    v_exp_f32 v40, v40
    v_mul_f32 v44, v40, v42
    """)
    xrow("v_add_f32", 44, 45, (8,))
    g("""
    v_rcp_f32 v44, v44
    v_mul_f32 v40, v40, v44
    """)
    ts(6)
    poll("global_load_dwordx4 v[32:35], v161, s[28:29] sc1\nglobal_load_dwordx4 v[36:39], v161, s[28:29] offset:128 sc1",
         chk([(32 + i, 162 + i // 4) for i in range(8)], 8), "o")
    ts(7)
    for i in range(4):
        g(f"v_pk_mul_f32 v[{32+2*i}:{33+2*i}], v[{32+2*i}:{33+2*i}], v[40:41] op_sel_hi:[1,0]")
    g(f"""
    v_permlane16_swap_b32 v32, v33
    v_permlane16_swap_b32 v34, v35
    v_permlane16_swap_b32 v36, v37
    v_permlane16_swap_b32 v38, v39
    v_add_f32 v32, v32, v33
    v_add_f32 v34, v34, v35
    v_add_f32 v36, v36, v37
    v_add_f32 v38, v38, v39
    v_permlane32_swap_b32 v32, v34
    v_permlane32_swap_b32 v36, v38
    v_add_f32 v32, v32, v34
    v_add_f32 v36, v36, v38
    v_add_f32 v32, v32, v32 row_ror:8 {DP}
    v_add_f32 v36, v36, v36 row_ror:8 {DP}
    v_cvt_pk_bf16_f32 v32, v32, v32
    v_cvt_pk_bf16_f32 v36, v36, v36
    """)
    for k in range(9):
        if k < 8:
            n, t = k // 4, k % 4
            for r in range(4):
                g(f"v_and_b32 v{64+4*k+r}, v{32+4*n}, v{4+r} quad_perm:[{t},{t},{t},{t}] {DP}")
        if k >= 1:
            u = k - 1
            g(f"{MF} v[184:187], v[{96+4*u}:{99+4*u}], v[{64+4*u}:{67+4*u}], {'0' if u == 0 else 'v[184:187]'}")
    g(f"""
    s_mov_b64 exec, s[58:59]
    s_cmp_lg_u32 s38, 0
    ds_write_b128 v164, v[184:187] offset:{LY}
    s_mov_b64 exec, -1
    s_waitcnt lgkmcnt(0)
    s_barrier
    s_cbranch_scc1 L_fin
    ds_read_b128 v[32:35], v165 offset:{LY}
    ds_read_b128 v[36:39], v165 offset:{LY+256}
    s_waitcnt lgkmcnt(0)
    v_pk_add_f32 v[32:33], v[32:33], v[36:37]
    v_pk_add_f32 v[34:35], v[34:35], v[38:39]
    """)
    rs4(32)
    g(f"""
    v_bfi_b32 v32, s61, v167, v32
    s_mov_b32 s62, 0x11111111
    s_mov_b32 s63, 0x11111111
    v_mov_b32 v33, v32 quad_perm:[1,1,1,1] {DP}
    v_mov_b32 v34, v32 quad_perm:[2,2,2,2] {DP}
    v_mov_b32 v35, v32 quad_perm:[3,3,3,3] {DP}
    s_mov_b64 exec, s[62:63]
    global_store_dwordx4 v166, v[32:35], s[28:29] sc1
    s_branch L_fin
    """)
    g("L_att_ffn:")
    attention('ffn')
    g("s_waitcnt vmcnt(0)")
    for n in range(2):
        for p in range(2):
            a = 96 + 16 * n + 8 * p
            g(f"v_swap_b32 v{a+2}, v{a+4}")
            g(f"v_swap_b32 v{a+3}, v{a+5}")
    ts(6)
    poll("\n".join(f"global_load_dwordx4 v[{32+4*k}:{35+4*k}], v160, s[28:29] offset:{1024*k-4096} sc1" for k in range(8)),
         chk([(32 + i, 161) for i in range(32)], 8), "y")
    ts(7)
    for n in range(2):
        a = 32 + 16 * n
        g(f"""
        v_pk_add_f32 v[{a}:{a+1}], v[{a}:{a+1}], v[{a+4}:{a+5}]
        v_pk_add_f32 v[{a+2}:{a+3}], v[{a+2}:{a+3}], v[{a+6}:{a+7}]
        v_pk_add_f32 v[{a+8}:{a+9}], v[{a+8}:{a+9}], v[{a+12}:{a+13}]
        v_pk_add_f32 v[{a+10}:{a+11}], v[{a+10}:{a+11}], v[{a+14}:{a+15}]
        v_pk_add_f32 v[{a}:{a+1}], v[{a}:{a+1}], v[{a+8}:{a+9}]
        v_pk_add_f32 v[{a+2}:{a+3}], v[{a+2}:{a+3}], v[{a+10}:{a+11}]
        """)
    g(f"""
    v_permlane16_swap_b32 v32, v33
    v_permlane16_swap_b32 v34, v35
    v_permlane16_swap_b32 v48, v49
    v_permlane16_swap_b32 v50, v51
    v_add_f32 v32, v32, v33
    v_add_f32 v34, v34, v35
    v_add_f32 v48, v48, v49
    v_add_f32 v50, v50, v51
    v_permlane32_swap_b32 v32, v34
    v_permlane32_swap_b32 v48, v50
    v_add_f32 v32, v32, v34
    v_add_f32 v48, v48, v50
    v_cvt_pk_bf16_f32 v32, v32, v48
    v_and_b32 v33, s42, v32
    v_lshlrev_b32 v32, 16, v32
    v_pk_add_f32 v[20:21], v[20:21], v[32:33]
    v_cvt_pk_bf16_f32 v20, v20, v21
    v_and_b32 v21, s42, v20
    v_lshlrev_b32 v20, 16, v20
    ds_write_b64 v162, v[20:21] offset:{LH}
    s_waitcnt lgkmcnt(0)
    s_barrier
    ds_read_b32 v40, v169 offset:{LH}
    ds_read_b128 v[32:35], v163 offset:{LH}
    ds_read_b128 v[36:39], v163 offset:{LH+16}
    s_waitcnt lgkmcnt(0)
    """)
    for i in range(4):
        g(f"v_pk_add_f32 v[{32+2*i}:{33+2*i}], v[{32+2*i}:{33+2*i}], v[40:41] op_sel_hi:[1,0] neg_lo:[0,1] neg_hi:[0,1]")
    g(f"""
    v_pk_add_f32 v[42:43], v[32:33], v[34:35]
    v_pk_mul_f32 v[44:45], v[32:33], v[32:33]
    v_pk_add_f32 v[42:43], v[42:43], v[36:37]
    v_pk_fma_f32 v[44:45], v[34:35], v[34:35], v[44:45]
    v_pk_add_f32 v[42:43], v[42:43], v[38:39]
    v_pk_fma_f32 v[44:45], v[36:37], v[36:37], v[44:45]
    v_add_f32 v42, v42, v43
    v_pk_fma_f32 v[44:45], v[38:39], v[38:39], v[44:45]
    v_add_f32 v44, v44, v45
    v_permlane32_swap_b32 v42, v44
    v_add_f32 v42, v42, v44
    v_add_f32 v42, v42, v42 row_ror:8 {DP}
    v_add_f32 v42, v42, v42 row_ror:4 {DP}
    v_add_f32 v42, v42, v42 row_ror:2 {DP}
    v_add_f32 v42, v42, v42 row_ror:1 {DP}
    v_mov_b32 v43, v42
    v_permlane16_swap_b32 v42, v43
    v_add_f32 v42, v42, v43
    v_mul_f32 v42, 0x3b000000, v42
    v_mov_b32 v43, v42
    v_permlane32_swap_b32 v42, v43
    v_fma_f32 v43, -v42, v42, v43
    v_add_f32 v42, v42, v40
    v_max_f32 v43, 0, v43
    v_cvt_pk_bf16_f32 v42, v42, v43
    v_and_b32 v43, s42, v42
    v_lshlrev_b32 v42, 16, v42
    v_add_f32 v43, 0x3727c5ac, v43
    v_pk_add_f32 v[20:21], v[20:21], v[42:43] op_sel_hi:[1,0] neg_lo:[0,1] neg_hi:[0,1]
    v_cvt_pk_bf16_f32 v43, v43, v43
    v_and_b32 v43, s42, v43
    v_sqrt_f32 v43, v43
    v_cvt_pk_bf16_f32 v20, v20, v21
    v_cvt_pk_bf16_f32 v43, v43, v43
    v_and_b32 v43, s42, v43
    v_rcp_f32 v42, v43
    v_and_b32 v21, s42, v20
    v_lshlrev_b32 v20, 16, v20
    v_pk_mul_f32 v[20:21], v[20:21], v[42:43] op_sel_hi:[1,0]
    v_cvt_pk_bf16_f32 v20, v20, v20
    v_cvt_pk_bf16_f32 v21, v21, v21
    """)
    for k in range(5):
        if k < 4:
            n, p = k // 2, k % 2
            for r in range(4):
                t = 2 * p + r // 2
                g(f"v_and_b32 v{64+4*k+r}, v{20+n}, v{164+r%2} quad_perm:[{t},{t},{t},{t}] {DP}")
        if k >= 1:
            u = k - 1
            for hl in range(2):
                a = 96 + 8 * u + 4 * hl; d = 176 + 4 * hl
                g(f"{MF} v[{d}:{d+3}], v[{a}:{a+3}], v[{64+4*u}:{67+4*u}], {'0' if u == 0 else f'v[{d}:{d+3}]'}")
    g(f"""
    s_mov_b64 exec, s[58:59]
    ds_write_b128 v166, v[176:179] offset:{LP}
    ds_write_b128 v166, v[180:183] offset:{LP+64}
    s_mov_b64 exec, -1
    s_waitcnt lgkmcnt(0)
    s_barrier
    ds_read_b128 v[32:35], v10 offset:{LP}
    ds_read_b128 v[36:39], v10 offset:{LP+1024}
    s_waitcnt lgkmcnt(0)
    v_pk_add_f32 v[32:33], v[32:33], v[36:37]
    v_pk_add_f32 v[34:35], v[34:35], v[38:39]
    """)
    rs4(32)
    g(f"""
    v_add_f32 v32, v32, v32 row_ror:8 {DP}
    v_cvt_pk_bf16_f32 v32, v32, v32
    v_lshlrev_b32 v32, 16, v32
    v_add_f32 v32, v32, v22
    v_cvt_pk_bf16_f32 v32, v32, v32
    v_lshlrev_b32 v32, 16, v32
    v_max_f32 v32, 0, v32
    v_mul_f32 v32, v32, v32
    v_cvt_pk_bf16_f32 v32, v32, v32
    """)
    for k in range(5):
        if k < 4:
            for r in range(4):
                g(f"v_and_b32 v{64+4*k+r}, v32, v{4+r} quad_perm:[{k},{k},{k},{k}] {DP}")
        if k >= 1:
            u = k - 1
            for n in range(2):
                a = 128 + 16 * n + 4 * u; d = 176 + 4 * n
                g(f"{MF} v[{d}:{d+3}], v[{a}:{a+3}], v[{64+4*u}:{67+4*u}], {'0' if u == 0 else f'v[{d}:{d+3}]'}")
    for r in range(4): g(f"v_permlane32_swap_b32 v{176+r}, v{180+r}")
    for r in range(4): g(f"v_add_f32 v{176+r}, v{180+r}, v{176+r} row_shl:4 {DP}")
    for r in range(4): g(f"v_bfi_b32 v{176+r}, s61, v168, v{176+r}")
    g("""
    s_mov_b64 exec, s[40:41]
    global_store_dwordx4 v167, v[176:179], s[28:29] sc1
    L_fin:
    """)
    ts(8)
    ts_end()
    g("L_end:\ns_endpgm")
    for t in tail: g(t)
    body, nn = pad(L)
    ref = open(os.path.join(os.path.dirname(__file__), "..", "cdna_kernels", NAME + ".s.ref")).read().split("\n")
    hdr = [l for l in ref if l.startswith(";") and "@launch" not in l]
    out = hdr + [f"; @launch grid=(256,1,1) block=(320,1,1) lds={LDS}",
                 '.amdgcn_target "amdgcn-amd-amdhsa--gfx950"', ".text", f".globl {NAME}_kernel", ".p2align 8",
                 f".type {NAME}_kernel,@function", f"{NAME}_kernel:"]
    out += [("" if l.endswith(":") else "    ") + l for l in body]
    out += ['.section .rodata,"a"', ".p2align 6", f".amdhsa_kernel {NAME}_kernel",
            "  .amdhsa_next_free_vgpr 192", "  .amdhsa_next_free_sgpr 102", "  .amdhsa_accum_offset 192",
            "  .amdhsa_group_segment_fixed_size 0", "  .amdhsa_kernarg_size 104", "  .amdhsa_user_sgpr_count 2",
            "  .amdhsa_user_sgpr_kernarg_segment_ptr 1", "  .amdhsa_system_sgpr_workgroup_id_x 1",
            "  .amdhsa_float_denorm_mode_32 3", ".end_amdhsa_kernel", ""]
    return "\n".join(out)

if __name__ == "__main__":
    kw = {}
    outp = sys.argv[1]
    for a in sys.argv[2:]:
        k, v = a.split("=")
        kw[k] = int(v) if v.lstrip('-').isdigit() else v
    open(outp, "w").write(gen(**kw))
```

```python
import sys, os
sys.path.insert(0, os.path.dirname(__file__))
from hz import pad
NAME = "sequential_preLN__sliding_block_cached__dense_activation_squared_relu__decode"

DEF = dict(ts=0, nt="nt", thr=4, wpos=2, spin=200000, ffn_early=0, fpre=0, b4=1, warm=0, kvw=0, b0=3, kpre=0, vpre=6, qfast=3, ofast=1, qgap=8, pfw=1, pff=1, pfg=128, wnt=1, pfnt=1, prio=1, qwait=1, pad=0, amp=0)
def gen(**kw):
    O = dict(DEF); O.update(kw)
    NT = O['nt'].replace('+', ' ') if O['nt'] != '-' else ''
    THR = O['thr']
    L = []
    tail = []
    def g(s):
        for l in s.strip('\n').split('\n'):
            if l.strip(): L.append(l.strip())
    QP, OP, ML, YP, FP, TSB = 0x10000, 0x30000, 0x50000, 0x60000, 0x70000, 0x100000
    SLOW = 0x80000
    LQ, LM, LO, LY, LH, LP = 0, 256, 512, 2560, 4608, 6656
    LDS = 8704
    nts = [0]
    def ts(i):
        if O['ts']: g(f"s_memrealtime s[{64+2*i}:{65+2*i}]")
    def ts_end():
        if not O['ts']: return
        g(f"""
        s_waitcnt lgkmcnt(0)
        s_mov_b64 exec, 1
        s_lshl_b32 s60, s2, 3
        s_add_u32 s60, s60, s3
        s_lshl_b32 s60, s60, 7
        s_add_u32 s60, s60, {TSB}
        v_mov_b32 v8, s60
        """)
        for i in range(16):
            g(f"v_mov_b32 v9, s{64+2*i}")
            g(f"global_store_dword v8, v9, s[28:29] offset:{4*i}")
    cnt = [0]
    def poll(loads, check, name):
        cnt[0] += 1; n = f"{name}{cnt[0]}"
        g(f"s_mov_b32 s36, {O['spin']}")
        g(f"L_{n}:")
        g(loads); g("s_waitcnt vmcnt(0)"); g(check)
        g(f"s_cbranch_vccnz L_{n}_r")
        g(f"L_{n}_d:")
        tail.append(f"L_{n}_r:\ns_sub_u32 s36, s36, 1\ns_cbranch_scc0 L_{n}\ns_branch L_{n}_d")
    def chk(regtags, acc):
        s = []
        rs = [r for r, t in regtags]
        for r, t in regtags: s.append(f"v_xor_b32 v{r}, v{r}, v{t}")
        s.append(f"v_or3_b32 v{acc}, v{rs[0]}, v{rs[1]}, v{rs[2]}")
        k = 3
        while k + 1 < len(rs):
            s.append(f"v_or3_b32 v{acc}, v{acc}, v{rs[k]}, v{rs[k+1]}"); k += 2
        if k < len(rs): s.append(f"v_or_b32 v{acc}, v{acc}, v{rs[k]}")
        s.append(f"v_and_b32 v{acc}, s61, v{acc}")
        s.append(f"v_cmp_ne_u32 vcc, 0, v{acc}")
        return "\n".join(s)
    def xrow(op, r, t, rors=(8, 4, 2, 1)):
        for k in rors: g(f"{op} v{r}, v{r}, v{r} row_ror:{k} row_mask:0xf bank_mask:0xf")
        for sw in (16, 32):
            g(f"v_mov_b32 v{t}, v{r}")
            g(f"v_permlane{sw}_swap_b32 v{r}, v{t}")
            g(f"{op} v{r}, v{r}, v{t}")
    def rs4(a):
        g(f"""
        v_permlane16_swap_b32 v{a}, v{a+1}
        v_permlane16_swap_b32 v{a+2}, v{a+3}
        v_add_f32 v{a}, v{a}, v{a+1}
        v_add_f32 v{a+2}, v{a+2}, v{a+3}
        v_permlane32_swap_b32 v{a}, v{a+2}
        v_add_f32 v{a}, v{a}, v{a+2}
        """)
    def masks():
        g("""
        v_and_b32 v8, 1, v0
        v_lshlrev_b32 v8, 4, v8
        v_mov_b32 v9, 0xffff
        v_lshlrev_b32 v9, v8, v9
        v_and_b32 v3, 3, v0
        v_lshrrev_b32 v8, 1, v0
        v_and_or_b32 v3, v8, 4, v3
        v_lshrrev_b32 v8, 1, v3
        v_cmp_eq_u32 vcc, 0, v8
        v_cndmask_b32 v4, 0, v9, vcc
        v_cmp_eq_u32 vcc, 1, v8
        v_cndmask_b32 v5, 0, v9, vcc
        v_cmp_eq_u32 vcc, 2, v8
        v_cndmask_b32 v6, 0, v9, vcc
        v_cmp_eq_u32 vcc, 3, v8
        v_cndmask_b32 v7, 0, v9, vcc
        """)
    MF = "v_mfma_f32_16x16x32_bf16"
    DP = "row_mask:0xf bank_mask:0xf"
    ts(0)
    if O['pad']: g("s_memrealtime s[96:97]")
    g("""
    s_cmp_ge_u32 s2, 256
    s_cbranch_scc1 L_end
    s_load_dwordx16 s[4:19], s[0:1], 0
    s_load_dwordx8 s[20:27], s[0:1], 64
    s_load_dwordx2 s[28:29], s[0:1], 96
    v_lshrrev_b32 v1, 6, v0
    v_and_b32 v0, 63, v0
    v_readfirstlane_b32 s3, v1
    v_lshrrev_b32 v1, 4, v0
    v_and_b32 v2, 15, v0
    s_and_b32 s32, s2, 7
    s_lshr_b32 s33, s2, 3
    s_and_b32 s30, s33, 3
    s_lshl_b32 s35, s32, 2
    s_add_u32 s30, s30, s35
    s_lshr_b32 s31, s33, 2
    s_mov_b32 s40, 0x0f0f0f0f
    s_mov_b32 s41, 0x0f0f0f0f
    s_mov_b32 s42, 0xffff0000
    s_mov_b32 s43, 0x3fb8aa3b
    s_movk_i32 s61, 0xff
    s_cmp_lg_u32 s3, 0
    s_cbranch_scc1 L_comp
    """)
    if O['prio']: g("s_setprio 3")
    g(f"""
    v_lshlrev_b32 v10, 4, v0
    s_lshl_b32 s35, s31, 7
    v_lshl_add_u32 v11, v0, 1, s35
    v_mov_b32 v24, 0
    v_lshlrev_b32 v25, 17, v1
    v_lshl_add_u32 v25, v2, 4, v25
    s_lshl_b32 s35, s31, 19
    s_lshl_b32 s37, s30, 8
    s_add_u32 s35, s35, s37
    s_waitcnt lgkmcnt(0)
    s_load_dword s34, s[28:29], 0
    global_load_dwordx4 v[12:15], v10, s[4:5]
    global_load_short_d16_hi v24, v11, s[4:5]
    s_add_u32 s10, s10, s35
    s_addc_u32 s11, s11, 0
    """)
    for t in range(16):
        g(f"global_load_dwordx4 v[{32+4*t}:{35+4*t}], v25, s[10:11] {NT}")
        if t < 15: g("v_add_u32 v25, 0x2000, v25")
    NW = 0
    if O['warm']:
        g("v_lshlrev_b32 v30, 16, v0\ns_mov_b64 exec, 1\nglobal_load_dword v169, v30, s[28:29] offset:128"); NW += 1
    if O['warm'] >= 2:
        g(f"""
        global_load_short_d16 v169, v30, s[18:19]
        global_load_short_d16 v169, v30, s[22:23]
        global_load_short_d16 v169, v30, s[24:25]
        s_mov_b64 exec, {(1 << 21) - 1}
        global_load_dword v169, v30, s[16:17]
        global_load_dword v169, v30, s[20:21]
        s_lshl_b32 s35, s32, 19
        v_add_u32 v30, s35, v30
        s_mov_b64 exec, 0xff
        global_load_dword v169, v30, s[12:13]
        """); NW += 6
    if O['warm']: g("s_mov_b64 exec, -1")
    if O['qfast'] or O['ofast']:
        g(f"""
        s_lshl_b32 s35, s30, 12
        s_lshl_b32 s37, s31, 9
        s_add_u32 s35, s35, s37
        s_add_u32 s35, s35, {QP}
        v_and_b32 v30, 3, v0
        v_lshl_add_u32 v30, v30, 7, s35
        v_lshrrev_b32 v31, 2, v0
        v_lshl_add_u32 v30, v31, 17, v30
        s_lshl_b32 s35, s30, 7
        s_add_u32 s35, s35, {ML}
        v_writelane_b32 v30, s35, 8
        s_mov_b64 exec, 0x1ff
        global_load_dword v168, v30, s[28:29] sc1
        s_mov_b64 exec, -1
        """); NW += 1
    if O['b0'] == 1: g("s_barrier")
    ts(1)
    masks()
    g(f"""
    s_lshl_b32 s35, s30, 12
    s_add_u32 s35, s35, {QP}
    s_add_u32 s44, s28, s35
    s_addc_u32 s45, s29, 0
    s_lshl_b32 s35, s31, 9
    v_lshl_add_u32 v26, v1, 3, v3
    v_lshl_add_u32 v27, v26, 4, s35
    s_waitcnt vmcnt({16+NW})
    """)
    if O['b0'] == 2: g("s_barrier")
    ts(2)
    for i in range(4):
        g(f"v_lshlrev_b32 v{16+2*i}, 16, v{12+i}")
        g(f"v_and_b32 v{17+2*i}, s42, v{12+i}")
    g("""
    v_pk_add_f32 v[8:9], v[16:17], v[18:19]
    v_pk_add_f32 v[12:13], v[20:21], v[22:23]
    v_pk_add_f32 v[8:9], v[8:9], v[12:13]
    v_add_f32 v8, v8, v9
    """)
    xrow("v_add_f32", 8, 9)
    g("v_mul_f32 v8, 0x3b000000, v8")
    for i in range(4):
        g(f"v_pk_add_f32 v[{16+2*i}:{17+2*i}], v[{16+2*i}:{17+2*i}], v[8:9] op_sel_hi:[1,0] neg_lo:[0,1] neg_hi:[0,1]")
    g("""
    v_pk_mul_f32 v[12:13], v[16:17], v[16:17]
    v_pk_fma_f32 v[12:13], v[18:19], v[18:19], v[12:13]
    v_pk_fma_f32 v[12:13], v[20:21], v[20:21], v[12:13]
    v_pk_fma_f32 v[12:13], v[22:23], v[22:23], v[12:13]
    v_add_f32 v12, v12, v13
    """)
    xrow("v_add_f32", 12, 13)
    g("""
    v_mul_f32 v12, 0x3b000000, v12
    v_cvt_pk_bf16_f32 v8, v8, v12
    v_and_b32 v12, s42, v8
    v_lshlrev_b32 v8, 16, v8
    v_add_f32 v12, 0x3727c5ac, v12
    v_sub_f32 v24, v24, v8
    v_cvt_pk_bf16_f32 v12, v12, v24
    v_and_b32 v24, s42, v12
    v_lshlrev_b32 v12, 16, v12
    v_sqrt_f32 v12, v12
    v_cvt_pk_bf16_f32 v12, v12, v12
    v_lshlrev_b32 v12, 16, v12
    v_rcp_f32 v12, v12
    v_mul_f32 v24, v24, v12
    v_cvt_pk_bf16_f32 v24, v24, v24
    """)
    for t in range(16):
        if O['b0'] == 3 + t: g("s_barrier")
        for r in range(4):
            g(f"v_and_b32 v{96+4*t+r}, v24, v{4+r} row_newbcast:{t} {DP}")
        if t >= 1:
            u = t - 1
            g(f"s_waitcnt vmcnt({15-u+NW})")
            g(f"{MF} v[160:163], v[{32+4*u}:{35+4*u}], v[{96+4*u}:{99+4*u}], {'0' if u == 0 else 'v[160:163]'}")
    g(f"""
    s_waitcnt vmcnt({NW}) lgkmcnt(0)
    {MF} v[160:163], v[92:95], v[156:159], v[160:163]
    s_add_u32 s34, s34, 1
    v_add_u32 v26, s34, v26
    v_and_b32 v28, 31, v0
    v_add_u32 v28, s34, v28
    v_and_b32 v28, s61, v28
    s_mov_b64 exec, s[40:41]
    """)
    for r in range(4): g(f"v_add_u32 v{160+r}, 0x80, v{160+r}")
    for r in range(4): g(f"v_bfi_b32 v{160+r}, s61, v26, v{160+r}")
    if O['qfast']:
        g("global_store_dwordx4 v27, v[160:163], s[44:45]")
    else:
        g("global_store_dwordx4 v27, v[160:163], s[44:45] sc1")
    g("s_mov_b64 exec, -1")
    QSLOW = f"s_mov_b64 exec, s[40:41]\nglobal_store_dwordx4 v31, v[160:163], s[44:45] sc1\ns_mov_b64 exec, -1"
    ts(3)
    def qissue(b, a):
        for u in range(4): g(f"global_load_dwordx4 v[{b+4*u}:{b+3+4*u}], v{a}, s[44:45] offset:{1024*u} sc1")
    def qsum(b):
        g(f"""
        v_pk_add_f32 v[164:165], v[{b}:{b+1}], v[{b+4}:{b+5}]
        v_pk_add_f32 v[166:167], v[{b+2}:{b+3}], v[{b+6}:{b+7}]
        v_pk_add_f32 v[172:173], v[{b+8}:{b+9}], v[{b+12}:{b+13}]
        v_pk_add_f32 v[174:175], v[{b+10}:{b+11}], v[{b+14}:{b+15}]
        """)
    if O['qfast']: qissue(32, 10)
    g(f"""
    v_bfe_u32 v8, v0, 3, 2
    v_lshlrev_b32 v8, 6, v8
    v_lshrrev_b32 v9, 5, v0
    v_lshl_add_u32 v8, v9, 5, v8
    v_and_b32 v9, 7, v0
    v_lshl_add_u32 v29, v9, 1, v8
    v_add_u32 v31, {SLOW}, v27
    """)
    if O['qfast']:
        NS = O['qfast'] + 1
        g(f"s_mov_b32 s36, {O['spin']}")
        for p in range(1, NS):
            if O['qgap']: g(f"s_sleep {O['qgap']}")
            qissue(32 + 16 * p, 10)
        ts(4)
        g("L_qp:")
        for p in range(NS):
            b = 32 + 16 * p
            g(f"s_waitcnt vmcnt({4*(NS-1)})")
            g(chk([(b + i, 28) for i in range(16)], 8))
            g(f"s_cbranch_vccz L_qok{p}")
            if p == 0:
                g(f"""
                s_sub_u32 s36, s36, 1
                s_cbranch_scc1 L_qok0
                s_and_b32 s35, s36, 7
                s_cselect_b32 s35, 0, {SLOW}
                v_add_u32 v30, s35, v10
                s_cbranch_scc0 L_qs
                L_qs_d:
                """)
                tail.append(f"L_qs:\n{QSLOW}\ns_waitcnt vmcnt(0)\n" + "\n".join(
                    f"global_load_dwordx4 v[{32+16*pp+4*u}:{35+16*pp+4*u}], v10, s[44:45] offset:{1024*u} sc1" for pp in range(1, NS) for u in range(4)) + "\ns_branch L_qs_d")
            qissue(b, 30 if p == 0 else 10)
        g("s_branch L_qp")
        for p in range(NS - 1, -1, -1):
            g(f"L_qok{p}:")
            qsum(32 + 16 * p)
            if p: g("s_branch L_qd")
        g("L_qd:")
    else:
        if O['qwait']: g("s_waitcnt vmcnt(0)")
        ts(4)
        poll("\n".join(f"global_load_dwordx4 v[{32+4*u}:{35+4*u}], v10, s[44:45] offset:{1024*u} sc1" for u in range(4)),
             chk([(32 + i, 28) for i in range(16)], 8), "q")
        qsum(32)
    ts(5)
    if O['ts']: g(f"s_sub_u32 s88, {O['spin']}, s36")
    g(f"""
    v_pk_add_f32 v[164:165], v[164:165], v[172:173]
    v_pk_add_f32 v[166:167], v[166:167], v[174:175]
    v_permlane32_swap_b32 v164, v166
    v_permlane32_swap_b32 v165, v167
    v_pk_add_f32 v[164:165], v[164:165], v[166:167]
    v_cvt_pk_bf16_f32 v164, v164, v165
    ds_write_b16 v29, v164 offset:{LQ}
    ds_write_b16_d16_hi v29, v164 offset:{LQ+16}
    s_waitcnt lgkmcnt(0)
    s_barrier
    {QSLOW if O['qfast'] else ''}
    s_lshl_b32 s35, s30, 7
    s_lshl_b32 s37, s31, 4
    s_add_u32 s35, s35, s37
    s_add_u32 s35, s35, {ML}
    v_mov_b32 v27, s35
    v_and_b32 v8, 3, v0
    v_lshlrev_b32 v8, 3, v8
    v_mov_b32 v13, s34
    v_mov_b32 v15, s34
    s_barrier
    ds_read_b64 v[10:11], v8 offset:{LM}
    s_waitcnt lgkmcnt(0)
    v_max_f32 v12, v10, v10 quad_perm:[1,0,3,2] {DP}
    v_max_f32 v12, v12, v12 quad_perm:[2,3,0,1] {DP}
    v_sub_f32 v10, v10, v12
    v_mul_f32 v10, s43, v10
    v_exp_f32 v10, v10
    v_mul_f32 v14, v10, v11
    v_add_f32 v14, v14, v14 quad_perm:[1,0,3,2] {DP}
    v_add_f32 v14, v14, v14 quad_perm:[2,3,0,1] {DP}
    s_mov_b64 exec, 1
    """)
    if O['ofast']:
        g("global_store_dwordx4 v27, v[12:15], s[28:29]")
        g(f"v_add_u32 v27, {SLOW}, v27")
    g("global_store_dwordx4 v27, v[12:15], s[28:29] sc1")
    ts(6)
    g("s_mov_b64 exec, -1")
    PNT = 'nt' if O['pfnt'] else ''
    G = O['pfg']; sh = 6 if G == 64 else 7
    if O['pfw']:
        if O['pfw'] == 1:
            g(f"""
            s_lshr_b32 s35, s33, 3
            s_lshl_b32 s35, s35, 17
            s_and_b32 s37, s33, 7
            s_lshl_b32 s37, s37, 13
            s_add_u32 s35, s35, s37
            s_add_u32 s35, s35, 0x10000
            """); nb = 8192
        else:
            g("s_lshl_b32 s35, s33, 14"); nb = 16384
        g(f"""
        s_lshl_b32 s37, s32, 19
        s_add_u32 s35, s35, s37
        v_lshl_add_u32 v8, v0, {sh}, s35
        """)
        for k in range(nb // (64 * G)):
            if k: g(f"v_add_u32 v8, {64*G}, v8")
            g(f"global_load_dword v{16+k}, v8, s[12:13] {PNT}")
    if O['pff']:
        g(f"""
        s_min_u32 s35, s32, 3
        s_mul_i32 s54, s32, 5
        s_add_u32 s54, s54, s35
        s_cmp_lt_u32 s32, 3
        s_cselect_b32 s55, 5, 4
        s_lshl_b32 s55, s55, 6
        s_and_b32 s56, s33, 15
        s_lshl_b32 s35, s54, 6
        s_mul_i32 s37, s56, {32*2752}
        s_add_u32 s35, s35, s37
        v_and_b32 v8, 3, v0
        v_lshlrev_b32 v8, 7, v8
        v_min_u32 v8, s55, v8
        v_lshrrev_b32 v9, 2, v0
        v_mul_u32_u24 v9, 2752, v9
        v_add3_u32 v8, v8, v9, s35
        v_add_u32 v9, {16*2752}, v8
        s_lshl_b32 s35, s54, 15
        s_add_u32 s55, s55, 64
        s_lshl_b32 s55, s55, 5
        s_mul_i32 s37, s56, s55
        s_add_u32 s35, s35, s37
        s_sub_u32 s55, s55, 64
        v_lshlrev_b32 v10, 7, v0
        v_add_u32 v11, 8192, v10
        v_min_u32 v11, s55, v11
        v_add_u32 v10, s35, v10
        v_add_u32 v11, s35, v11
        """)
    g("s_barrier\ns_barrier")
    if O['pff']:
        g(f"""
        s_cmp_lt_u32 s33, 16
        s_cbranch_scc1 L_nopf
        global_load_dword v20, v8, s[16:17] {PNT}
        global_load_dword v21, v9, s[16:17] {PNT}
        global_load_dword v22, v10, s[20:21] {PNT}
        global_load_dword v23, v11, s[20:21] {PNT}
        L_nopf:
        """)
    g("s_waitcnt vmcnt(0)")
    ts_end()
    g("s_endpgm")
    g(f"""
    L_comp:
    s_sub_u32 s38, s3, 1
    v_lshrrev_b32 v8, 2, v2
    v_lshlrev_b32 v8, 8, v8
    v_lshl_add_u32 v8, v1, 6, v8
    v_and_b32 v9, 3, v0
    v_lshl_add_u32 v11, v9, 4, v8
    v_lshlrev_b32 v10, 4, v0
    s_lshl_b32 s35, s30, 20
    s_lshl_b32 s37, s31, 15
    s_add_u32 s35, s35, s37
    s_lshl_b32 s37, s38, 13
    s_add_u32 s35, s35, s37
    s_add_u32 s35, s35, {786432+4096}
    s_waitcnt lgkmcnt(0)
    s_load_dword s34, s[28:29], 0
    s_add_u32 s6, s6, s35
    s_addc_u32 s7, s7, 0
    s_add_u32 s8, s8, s35
    s_addc_u32 s9, s9, 0
    """)
    nl = 0
    if O['kvw']:
        g("s_mov_b64 exec, 1\nglobal_load_dword v188, v10, s[6:7]\nglobal_load_dword v189, v10, s[8:9]\ns_mov_b64 exec, -1")
    for t in range(O['kpre']):
        g(f"global_load_dwordx4 v[{32+4*t}:{35+4*t}], v11, s[6:7] offset:{1024*t-4096} {NT}"); nl += 1
    ts(1)
    masks()
    for r in range(160, 176): g(f"v_mov_b32 v{r}, 0")
    g(f"""
    v_lshlrev_b32 v12, 6, v1
    v_and_b32 v9, 3, v0
    v_lshl_add_u32 v12, v9, 4, v12
    s_lshl_b32 s35, s38, 3
    v_mov_b32 v13, s35
    v_lshl_add_u32 v14, v1, 3, v3
    s_lshl_b32 s35, s38, 9
    v_lshl_add_u32 v14, v14, 4, s35
    s_mov_b32 s62, 0x55555555
    s_mov_b32 s63, 0x55555555
    s_mov_b32 s46, 0x000f000f
    s_mov_b32 s47, 0x000f000f
    s_lshl_b64 s[48:49], s[46:47], 4
    s_lshl_b64 s[50:51], s[46:47], 8
    s_lshl_b64 s[52:53], s[46:47], 12
    s_cmp_lt_u32 s33, 16
    s_cbranch_scc1 L_att_wo
    s_sub_u32 s39, s2, 128
    s_cmp_lt_u32 s39, 43
    s_cbranch_scc1 L_att_ffn
    """)

    def w_setup(role):
        if role == 'wo':
            g(f"""
            s_and_b32 s54, s33, 1
            s_lshl_b32 s35, s32, 1
            s_add_u32 s56, s54, s35
            s_lshl_b32 s54, s56, 1
            s_lshr_b32 s35, s38, 1
            s_add_u32 s54, s54, s35
            s_lshr_b32 s55, s33, 1
            s_lshl_b32 s35, s54, 17
            s_and_b32 s37, s38, 1
            s_lshl_b32 s37, s37, 14
            s_add_u32 s35, s35, s37
            s_lshl_b32 s37, s55, 7
            s_add_u32 s35, s35, s37
            s_add_u32 s35, s35, 4096
            s_add_u32 s12, s12, s35
            s_addc_u32 s13, s13, 0
            v_lshrrev_b32 v8, 3, v2
            v_lshlrev_b32 v8, 5, v8
            v_and_b32 v9, 1, v1
            v_lshl_add_u32 v8, v9, 3, v8
            v_lshrrev_b32 v9, 1, v1
            v_add_u32 v8, v8, v9
            v_lshlrev_b32 v8, 10, v8
            v_and_b32 v9, 7, v0
            v_lshl_add_u32 v16, v9, 4, v8
            v_add_u32 v17, 0x10000, v16
            """)
        if role == 'ffn':
            g(f"""
            s_min_u32 s35, s32, 3
            s_mul_i32 s39, s32, 5
            s_add_u32 s39, s39, s35
            s_add_u32 s39, s39, s33
            s_sub_u32 s39, s39, 16
            s_mul_i32 s35, s38, {128*2752}
            s_lshl_b32 s37, s39, 6
            s_add_u32 s35, s35, s37
            s_add_u32 s16, s16, s35
            s_addc_u32 s17, s17, 0
            s_lshl_b32 s35, s39, 15
            s_lshl_b32 s37, s38, 8
            s_add_u32 s35, s35, s37
            s_add_u32 s20, s20, s35
            s_addc_u32 s21, s21, 0
            v_lshrrev_b32 v8, 2, v2
            v_lshl_add_u32 v18, v8, 3, v1
            v_mul_u32_u24 v8, 2752, v18
            v_and_b32 v9, 3, v0
            v_lshl_add_u32 v16, v9, 4, v8
            v_lshrrev_b32 v8, 3, v2
            v_lshl_add_u32 v8, v1, 1, v8
            v_lshlrev_b32 v8, 12, v8
            v_and_b32 v9, 7, v0
            v_lshl_add_u32 v17, v9, 4, v8
            v_lshl_add_u32 v19, v1, 3, v9
            s_lshl_b32 s35, s39, 6
            v_lshl_add_u32 v19, v19, 1, s35
            v_and_b32 v8, 1, v0
            v_lshl_add_u32 v18, v8, 2, v18
            v_bfe_u32 v8, v0, 1, 1
            v_lshl_add_u32 v18, v8, 5, v18
            s_lshl_b32 s35, s38, 8
            v_lshl_add_u32 v18, v18, 1, s35
            v_mov_b32 v20, 0
            v_mov_b32 v21, 0
            v_mov_b32 v22, 0
            """)
    def w_loads(role, part):
        out = []
        NT = 'nt' if O['wnt'] else ''
        if role == 'wo' and part == 0:
            for n in range(2):
                for t in range(4):
                    r = 96 + 16 * n + 4 * t
                    out.append(f"global_load_dwordx4 v[{r}:{r+3}], v{16+n}, s[12:13] offset:{2048*t-4096} {NT}")
        if role == 'ffn' and part == 0:
            for n in range(2):
                for t in range(4):
                    r = 96 + 16 * n + 4 * t
                    off = (64 * n + 32 * (t // 2) + 4 * (t % 2)) * 2752
                    out.append(f"v_add_u32 v23, {off}, v16\nglobal_load_dwordx4 v[{r}:{r+3}], v23, s[16:17] {NT}")
        if role == 'ffn' and part == 1:
            out.append("global_load_short_d16_hi v20, v18, s[4:5]")
            out.append("global_load_short_d16_hi v21, v18, s[4:5] offset:128")
            out.append("global_load_short_d16_hi v22, v19, s[18:19]")
            for n in range(2):
                for t in range(4):
                    r = 128 + 16 * n + 4 * t
                    out.append(f"global_load_dwordx4 v[{r}:{r+3}], v17, s[20:21] offset:{1024*t+128*n} {NT}")
        return out

    def attention(role):
        w_setup(role)
        thr = THR
        if O['b0']: g("s_barrier")
        for t in range(O['kpre'], 8):
            if t >= thr: g(f"s_waitcnt vmcnt({thr-1})")
            g(f"global_load_dwordx4 v[{32+4*t}:{35+4*t}], v11, s[6:7] offset:{1024*t-4096} {NT}")
        ts(10)
        def vload(t): g(f"global_load_dwordx4 v[{64+4*t}:{67+4*t}], v10, s[8:9] offset:{1024*t-4096} {NT}")
        for t in range(O['vpre']):
            if t < thr: g(f"s_waitcnt vmcnt({thr-1})")
            vload(t)
        after = 0
        W = w_loads(role, 0) + w_loads(role, 1)
        early = O['ffn_early'] if role == 'ffn' else 0
        for x in W[:early]: g(x); after += 1
        W = W[early:]
        late = []
        if role == 'ffn' and O['fpre'] >= 0: late = W[O['fpre']:]; W = W[:O['fpre']]
        inpv = []
        if role == 'wo' and O['pfw'] == 1: inpv = W[:4]; late = W[4:]; W = []
        if role == 'wo' and O['pfw'] == 2: late = W; W = []
        ts(2)
        g("s_barrier")
        ts(3)
        for u in range(4):
            g(f"s_mov_b64 exec, s[{46+2*u}:{47+2*u}]")
            g(f"ds_read_b128 v[{160+4*u}:{163+4*u}], v12 offset:{LQ}")
        g("s_mov_b64 exec, -1")
        for t in range(O['vpre'], 8): vload(t)
        if O['wpos'] == 0:
            for x in W: g(x); after += 1
            W = []
        g(f"s_waitcnt vmcnt({8+after}) lgkmcnt(0)")
        for u in range(4):
            for c in range(2):
                t = 4 * c + u
                g(f"{MF} v[{176+4*c}:{179+4*c}], v[{32+4*t}:{35+4*t}], v[{160+4*u}:{163+4*u}], {'0' if u == 0 else f'v[{176+4*c}:{179+4*c}]'}")
        g("s_add_u32 s34, s34, 1")
        if O['wpos'] == 1:
            for x in W: g(x); after += 1
            W = []
        for c in range(2):
            g(f"v_mov_b32 v{24+c}, v{176+4*c} quad_perm:[0,0,0,0] {DP}")
        for r in range(1, 4):
            for c in range(2):
                g(f"v_add_f32 v{24+c}, v{176+4*c+r}, v{24+c} quad_perm:[{r},{r},{r},{r}] {DP}")
        g(f"""
        v_cvt_pk_bf16_f32 v24, v24, v25
        v_and_b32 v25, s42, v24
        v_lshlrev_b32 v24, 16, v24
        v_mul_f32 v24, 0x3db504f3, v24
        v_mul_f32 v25, 0x3db504f3, v25
        v_cvt_pk_bf16_f32 v24, v24, v25
        v_and_b32 v25, s42, v24
        v_lshlrev_b32 v24, 16, v24
        v_max_f32 v26, v24, v25
        """)
        xrow("v_max_f32", 26, 27, (4, 8))
        g("""
        v_sub_f32 v28, v24, v26
        v_sub_f32 v29, v25, v26
        v_mul_f32 v28, s43, v28
        v_mul_f32 v29, s43, v29
        v_exp_f32 v28, v28
        v_exp_f32 v29, v29
        v_add_f32 v27, v28, v29
        """)
        xrow("v_add_f32", 27, 28, (4, 8))
        g(f"""
        s_mov_b64 exec, 1
        ds_write_b64 v13, v[26:27] offset:{LM}
        s_mov_b64 exec, -1
        v_and_b32 v8, 3, v0
        v_lshlrev_b32 v8, 3, v8
        s_waitcnt lgkmcnt(0)
        s_barrier
        ds_read_b32 v26, v8 offset:{LM}
        s_waitcnt lgkmcnt(0)
        v_max_f32 v26, v26, v26 quad_perm:[1,0,3,2] {DP}
        v_max_f32 v26, v26, v26 quad_perm:[2,3,0,1] {DP}
        v_sub_f32 v28, v24, v26
        v_sub_f32 v29, v25, v26
        v_mul_f32 v28, s43, v28
        v_mul_f32 v29, s43, v29
        v_exp_f32 v28, v28
        v_exp_f32 v29, v29
        v_cvt_pk_bf16_f32 v28, v28, v28
        v_cvt_pk_bf16_f32 v29, v29, v29
        """)
        for t in range(8):
            for r in range(4):
                g(f"v_and_b32 v{32+4*t+r}, v{28+t//4}, v{4+r} row_newbcast:{4*(t%4)} {DP}")
        for x in W: g(x); after += 1
        ts(4)
        g(f"""
        s_lshl_b32 s35, s30, 12
        s_lshl_b32 s37, s31, 9
        s_add_u32 s35, s35, s37
        s_add_u32 s35, s35, {OP}
        v_lshl_add_u32 v24, v0, 3, s35
        v_lshrrev_b32 v25, 1, v0
        v_add_u32 v25, s34, v25
        v_and_b32 v26, 31, v0
        v_lshrrev_b32 v27, 5, v0
        v_lshlrev_b32 v27, 10, v27
        v_lshl_add_u32 v26, v26, 4, v27
        """)
        pre(role)
        for t in range(8):
            g(f"s_waitcnt vmcnt({7-t+after})")
            g(f"{MF} v[184:187], v[{64+4*t}:{67+4*t}], v[{32+4*t}:{35+4*t}], {'0' if t == 0 else 'v[184:187]'}")
            if inpv and 3 <= t < 7: g(inpv[t - 3]); after += 1
        ts(9)
        g(f"""
        s_mov_b64 exec, s[40:41]
        s_cmp_lg_u32 s38, 0
        ds_write_b128 v14, v[184:187] offset:{LO}
        s_mov_b64 exec, -1
        s_waitcnt lgkmcnt(0)
        s_barrier
        s_cbranch_scc1 L_nopub_{role}
        ds_read_b128 v[32:35], v26 offset:{LO}
        ds_read_b128 v[36:39], v26 offset:{LO+512}
        s_waitcnt lgkmcnt(0)
        v_pk_add_f32 v[32:33], v[32:33], v[36:37]
        v_pk_add_f32 v[34:35], v[34:35], v[38:39]
        v_permlane32_swap_b32 v32, v34
        v_permlane32_swap_b32 v33, v35
        v_pk_add_f32 v[32:33], v[32:33], v[34:35]
        v_bfi_b32 v28, s61, v25, v32
        v_bfi_b32 v29, s61, v25, v33
        v_mov_b32 v30, v28 quad_perm:[1,1,3,3] {DP}
        v_mov_b32 v31, v29 quad_perm:[1,1,3,3] {DP}
        s_mov_b64 exec, s[62:63]
        """)
        if O['ofast']:
            g("global_store_dwordx4 v24, v[28:31], s[28:29]")
            g(f"v_add_u32 v24, {SLOW}, v24")
        if role != 'wo' or not O['ofast']:
            g("global_store_dwordx4 v24, v[28:31], s[28:29] sc1")
        g(f"""
        s_mov_b64 exec, -1
        L_nopub_{role}:
        """)
        ts(5)
        g("s_barrier")
        if late:
            for x in late: g(x)

    def pre(role):
        if role == 'wo':
            g(f"""
            s_lshl_b32 s35, s54, 7
            s_add_u32 s35, s35, {ML}
            v_lshrrev_b32 v8, 3, v0
            v_lshl_add_u32 v160, v8, 4, s35
            s_lshl_b32 s35, s54, 12
            s_and_b32 s37, s38, 1
            s_lshl_b32 s37, s37, 8
            s_add_u32 s35, s35, s37
            s_add_u32 s35, s35, {OP}
            v_lshl_add_u32 v8, v8, 9, s35
            v_and_b32 v9, 7, v0
            v_lshl_add_u32 v161, v9, 4, v8
            s_lshr_b32 s37, s37, 4
            s_add_u32 s37, s37, s34
            v_add_u32 v9, s37, v9
            v_and_b32 v162, s61, v9
            v_add_u32 v9, 8, v9
            v_and_b32 v163, s61, v9
            v_lshrrev_b32 v8, 1, v1
            s_lshl_b32 s35, s38, 9
            v_lshl_add_u32 v8, v8, 8, s35
            v_and_b32 v9, 1, v1
            v_lshl_add_u32 v9, v9, 3, v3
            v_lshl_add_u32 v164, v9, 4, v8
            v_lshlrev_b32 v8, 9, v1
            v_lshl_add_u32 v165, v2, 4, v8
            s_lshl_b32 s35, s55, 12
            s_lshl_b32 s37, s56, 8
            s_add_u32 s35, s35, s37
            s_add_u32 s35, s35, {YP}
            v_lshl_add_u32 v166, v0, 2, s35
            v_lshrrev_b32 v8, 2, v0
            v_add_u32 v167, s34, v8
            s_mov_b32 s58, 0x0f0f0f0f
            s_mov_b32 s59, 0xf0f0f0f0
            s_cmp_eq_u32 s38, 0
            s_cselect_b64 s[50:51], s[62:63], 0
            """)
        if role == 'ffn':
            g(f"""
            s_lshl_b32 s35, s38, 13
            s_add_u32 s35, s35, {YP+4096}
            v_add_u32 v160, s35, v10
            v_add_u32 v8, s34, v2
            v_and_b32 v161, s61, v8
            s_lshl_b32 s35, s38, 9
            v_lshl_add_u32 v162, v0, 3, s35
            v_lshlrev_b32 v163, 5, v0
            v_or_b32 v164, v4, v6
            v_or_b32 v165, v5, v7
            v_lshl_add_u32 v8, v1, 7, s35
            v_and_b32 v9, 3, v0
            v_lshl_add_u32 v166, v9, 4, v8
            s_mul_i32 s35, s38, {4*6144}
            s_lshl_b32 s37, s39, 7
            s_add_u32 s35, s35, s37
            s_add_u32 s35, s35, {FP}
            v_mul_u32_u24 v8, 6144, v1
            v_lshl_add_u32 v8, v3, 4, v8
            v_add_u32 v167, s35, v8
            v_add_u32 v168, s34, v3
            v_mov_b32 v169, 0
            s_mov_b32 s58, 0x00f0000f
            s_mov_b32 s59, 0xf0000f00
            """)

    attention('pl')
    g(f"""
    s_sub_u32 s39, s2, 192
    s_cmp_lt_u32 s39, 32
    s_cselect_b32 s35, 1, 99
    s_cmp_eq_u32 s38, s35
    s_cbranch_scc0 L_fin
    """)
    g(f"""
    s_lshr_b32 s54, s39, 1
    s_and_b32 s55, s39, 1
    v_and_b32 v9, 3, v0
    s_lshl_b32 s35, s54, 5
    s_lshl_b32 s37, s55, 2
    s_add_u32 s35, s35, s37
    v_lshl_add_u32 v8, v1, 3, v9
    v_add_u32 v8, s35, v8
    v_lshlrev_b32 v16, 1, v8
    v_mov_b32 v20, 0
    v_mov_b32 v21, 0
    global_load_short_d16_hi v20, v16, s[4:5]
    global_load_short_d16_hi v21, v16, s[22:23]
    s_lshr_b32 s35, s54, 1
    s_lshl_b32 s35, s35, 12
    s_and_b32 s37, s39, 3
    s_lshl_b32 s57, s37, 4
    s_add_u32 s35, s35, s57
    s_add_u32 s35, s35, {YP}
    v_lshrrev_b32 v8, 2, v2
    v_lshl_add_u32 v8, v8, 8, s35
    v_lshl_add_u32 v8, v1, 6, v8
    v_lshl_add_u32 v17, v9, 2, v8
    s_add_u32 s37, s37, s34
    v_lshl_add_u32 v8, v1, 2, s37
    v_and_b32 v18, s61, v8
    s_mul_i32 s35, s54, 6144
    s_lshl_b32 s37, s55, 6
    s_add_u32 s35, s35, s37
    s_add_u32 s35, s35, {FP+2048}
    v_lshrrev_b32 v8, 2, v0
    v_lshl_add_u32 v8, v8, 7, s35
    v_lshl_add_u32 v19, v9, 4, v8
    s_lshl_b32 s37, s55, 2
    s_add_u32 s37, s37, s34
    v_add_u32 v8, s37, v9
    v_and_b32 v22, s61, v8
    s_mov_b32 s58, -1
    s_mov_b32 s59, 0xfff
    """)
    poll("\n".join(f"global_load_dword v{32+u}, v17, s[28:29] offset:{1024*u} sc1" for u in range(4)),
         chk([(32 + i, 18) for i in range(4)], 8), "rh")
    g(f"""
    v_add_f32 v32, v32, v33
    v_add_f32 v34, v34, v35
    v_add_f32 v32, v32, v34
    v_add_f32 v32, v32, v32 row_ror:4 {DP}
    v_add_f32 v32, v32, v32 row_ror:8 {DP}
    v_cvt_pk_bf16_f32 v32, v32, v32
    v_lshlrev_b32 v32, 16, v32
    v_add_f32 v20, v20, v32
    v_cvt_pk_bf16_f32 v20, v20, v20
    v_and_b32 v20, s42, v20
    """)
    ts(6)
    poll("""
    v_mov_b32 v40, v22
    v_mov_b32 v41, v22
    v_mov_b32 v42, v22
    v_mov_b32 v43, v22
    global_load_dwordx4 v[32:35], v19, s[28:29] offset:-2048 sc1
    global_load_dwordx4 v[36:39], v19, s[28:29] sc1
    s_mov_b64 exec, s[58:59]
    global_load_dwordx4 v[40:43], v19, s[28:29] offset:2048 sc1
    s_mov_b64 exec, -1
    """, chk([(32 + i, 22) for i in range(12)], 8), "rf")
    ts(7)
    g(f"""
    v_pk_add_f32 v[32:33], v[32:33], v[36:37]
    v_pk_add_f32 v[34:35], v[34:35], v[38:39]
    v_pk_add_f32 v[32:33], v[32:33], v[40:41]
    v_pk_add_f32 v[34:35], v[34:35], v[42:43]
    """)
    rs4(32)
    g(f"""
    v_add_f32 v32, v32, v32 row_ror:4 {DP}
    v_add_f32 v32, v32, v32 row_ror:8 {DP}
    v_cvt_pk_bf16_f32 v32, v32, v32
    v_lshlrev_b32 v32, 16, v32
    v_add_f32 v32, v32, v21
    v_cvt_pk_bf16_f32 v32, v32, v32
    v_lshlrev_b32 v32, 16, v32
    v_add_f32 v32, v32, v20
    v_cvt_pk_bf16_f32 v32, v32, v32
    s_mov_b64 exec, s[46:47]
    global_store_short v16, v32, s[24:25]
    s_cmp_lg_u32 s39, 0
    s_cbranch_scc1 L_fin
    s_mov_b64 exec, 1
    v_mov_b32 v8, 0
    v_mov_b32 v9, s34
    global_store_dword v8, v9, s[28:29]
    """)
    if O['pad']:
        g(f"""
        s_memrealtime s[98:99]
        s_waitcnt lgkmcnt(0)
        s_sub_u32 s98, s98, s96
        s_mul_i32 s98, s98, {O['amp']}
        s_add_u32 s96, s96, s98
        s_add_u32 s96, s96, {O['pad']}
        L_pad:
        s_memrealtime s[98:99]
        s_waitcnt lgkmcnt(0)
        s_sub_u32 s98, s98, s96
        s_cmp_lt_i32 s98, 0
        s_cbranch_scc1 L_pad
        """)
    g("s_branch L_fin")
    g("L_att_wo:")
    attention('wo')
    ts(6)
    g(f"""
    s_mov_b32 s36, {O['spin']}
    L_wp:
    global_load_dwordx4 v[40:43], v160, s[28:29] sc1
    global_load_dwordx4 v[32:35], v161, s[28:29] sc1
    global_load_dwordx4 v[36:39], v161, s[28:29] offset:128 sc1
    s_waitcnt vmcnt(2)
    v_mov_b32 v44, v40
    v_xor_b32 v41, s34, v41
    v_xor_b32 v43, s34, v43
    """)
    xrow("v_max_f32", 44, 45, (8,))
    g("""
    v_sub_f32 v40, v40, v44
    v_mul_f32 v40, s43, v40
    v_exp_f32 v40, v40
    v_or_b32 v41, v41, v43
    v_cmp_ne_u32 s[60:61], 0, v41
    v_mul_f32 v44, v40, v42
    """.replace("s[60:61]", "s[48:49]"))
    xrow("v_add_f32", 44, 45, (8,))
    g("""
    v_rcp_f32 v44, v44
    s_waitcnt vmcnt(0)
    """)
    g(chk([(32 + i, 162 + i // 4) for i in range(8)], 8))
    g("""
    v_mul_f32 v40, v40, v44
    s_or_b64 vcc, vcc, s[48:49]
    s_cbranch_vccnz L_wp_r
    L_wp_d:
    """)
    OSLOW = "s_mov_b64 exec, s[50:51]\nglobal_store_dwordx4 v24, v[28:31], s[28:29] sc1\ns_mov_b64 exec, -1" if O['ofast'] else ""
    tail.append(f"""
    L_wp_r:
    s_sub_u32 s36, s36, 1
    s_cbranch_scc1 L_wp_d
    s_and_b32 s35, s36, 7
    s_cmp_le_u32 s35, 1
    s_cselect_b32 s35, {SLOW if O['ofast'] else 0}, 0
    v_xor_b32 v160, s35, v160
    v_xor_b32 v161, s35, v161
    s_cbranch_scc0 L_wp
    {OSLOW}
    s_branch L_wp
    """)
    ts(7)
    if O['ts']: g(f"s_sub_u32 s88, {O['spin']}, s36")
    for i in range(4):
        g(f"v_pk_mul_f32 v[{32+2*i}:{33+2*i}], v[{32+2*i}:{33+2*i}], v[40:41] op_sel_hi:[1,0]")
    g(f"""
    v_permlane16_swap_b32 v32, v33
    v_permlane16_swap_b32 v34, v35
    v_permlane16_swap_b32 v36, v37
    v_permlane16_swap_b32 v38, v39
    v_add_f32 v32, v32, v33
    v_add_f32 v34, v34, v35
    v_add_f32 v36, v36, v37
    v_add_f32 v38, v38, v39
    v_permlane32_swap_b32 v32, v34
    v_permlane32_swap_b32 v36, v38
    v_add_f32 v32, v32, v34
    v_add_f32 v36, v36, v38
    v_add_f32 v32, v32, v32 row_ror:8 {DP}
    v_add_f32 v36, v36, v36 row_ror:8 {DP}
    v_cvt_pk_bf16_f32 v32, v32, v32
    v_cvt_pk_bf16_f32 v36, v36, v36
    """)
    for k in range(9):
        if k < 8:
            n, t = k // 4, k % 4
            for r in range(4):
                g(f"v_and_b32 v{64+4*k+r}, v{32+4*n}, v{4+r} quad_perm:[{t},{t},{t},{t}] {DP}")
        if k >= 1:
            u = k - 1
            g(f"{MF} v[184:187], v[{96+4*u}:{99+4*u}], v[{64+4*u}:{67+4*u}], {'0' if u == 0 else 'v[184:187]'}")
    g(f"""
    s_mov_b64 exec, s[58:59]
    s_cmp_lg_u32 s38, 0
    ds_write_b128 v164, v[184:187] offset:{LY}
    {OSLOW}
    s_mov_b64 exec, -1
    s_waitcnt lgkmcnt(0)
    s_barrier
    s_cbranch_scc1 L_fin
    ds_read_b128 v[32:35], v165 offset:{LY}
    ds_read_b128 v[36:39], v165 offset:{LY+256}
    s_waitcnt lgkmcnt(0)
    v_pk_add_f32 v[32:33], v[32:33], v[36:37]
    v_pk_add_f32 v[34:35], v[34:35], v[38:39]
    """)
    rs4(32)
    g(f"""
    v_bfi_b32 v32, s61, v167, v32
    s_mov_b32 s62, 0x11111111
    s_mov_b32 s63, 0x11111111
    v_mov_b32 v33, v32 quad_perm:[1,1,1,1] {DP}
    v_mov_b32 v34, v32 quad_perm:[2,2,2,2] {DP}
    v_mov_b32 v35, v32 quad_perm:[3,3,3,3] {DP}
    s_mov_b64 exec, s[62:63]
    global_store_dwordx4 v166, v[32:35], s[28:29] sc1
    s_branch L_fin
    """)
    g("L_att_ffn:")
    attention('ffn')
    g("s_waitcnt vmcnt(0)")
    for n in range(2):
        for p in range(2):
            a = 96 + 16 * n + 8 * p
            g(f"v_swap_b32 v{a+2}, v{a+4}")
            g(f"v_swap_b32 v{a+3}, v{a+5}")
    ts(6)
    poll("\n".join(f"global_load_dwordx4 v[{32+4*k}:{35+4*k}], v160, s[28:29] offset:{1024*k-4096} sc1" for k in range(8)),
         chk([(32 + i, 161) for i in range(32)], 8), "y")
    ts(7)
    for n in range(2):
        a = 32 + 16 * n
        g(f"""
        v_pk_add_f32 v[{a}:{a+1}], v[{a}:{a+1}], v[{a+4}:{a+5}]
        v_pk_add_f32 v[{a+2}:{a+3}], v[{a+2}:{a+3}], v[{a+6}:{a+7}]
        v_pk_add_f32 v[{a+8}:{a+9}], v[{a+8}:{a+9}], v[{a+12}:{a+13}]
        v_pk_add_f32 v[{a+10}:{a+11}], v[{a+10}:{a+11}], v[{a+14}:{a+15}]
        v_pk_add_f32 v[{a}:{a+1}], v[{a}:{a+1}], v[{a+8}:{a+9}]
        v_pk_add_f32 v[{a+2}:{a+3}], v[{a+2}:{a+3}], v[{a+10}:{a+11}]
        """)
    g(f"""
    v_permlane16_swap_b32 v32, v33
    v_permlane16_swap_b32 v34, v35
    v_permlane16_swap_b32 v48, v49
    v_permlane16_swap_b32 v50, v51
    v_add_f32 v32, v32, v33
    v_add_f32 v34, v34, v35
    v_add_f32 v48, v48, v49
    v_add_f32 v50, v50, v51
    v_permlane32_swap_b32 v32, v34
    v_permlane32_swap_b32 v48, v50
    v_add_f32 v32, v32, v34
    v_add_f32 v48, v48, v50
    v_cvt_pk_bf16_f32 v32, v32, v48
    v_and_b32 v33, s42, v32
    v_lshlrev_b32 v32, 16, v32
    v_pk_add_f32 v[20:21], v[20:21], v[32:33]
    v_cvt_pk_bf16_f32 v20, v20, v21
    v_and_b32 v21, s42, v20
    v_lshlrev_b32 v20, 16, v20
    ds_write_b64 v162, v[20:21] offset:{LH}
    s_waitcnt lgkmcnt(0)
    s_barrier
    ds_read_b32 v40, v169 offset:{LH}
    ds_read_b128 v[32:35], v163 offset:{LH}
    ds_read_b128 v[36:39], v163 offset:{LH+16}
    s_waitcnt lgkmcnt(0)
    """)
    for i in range(4):
        g(f"v_pk_add_f32 v[{32+2*i}:{33+2*i}], v[{32+2*i}:{33+2*i}], v[40:41] op_sel_hi:[1,0] neg_lo:[0,1] neg_hi:[0,1]")
    g(f"""
    v_pk_add_f32 v[42:43], v[32:33], v[34:35]
    v_pk_mul_f32 v[44:45], v[32:33], v[32:33]
    v_pk_add_f32 v[42:43], v[42:43], v[36:37]
    v_pk_fma_f32 v[44:45], v[34:35], v[34:35], v[44:45]
    v_pk_add_f32 v[42:43], v[42:43], v[38:39]
    v_pk_fma_f32 v[44:45], v[36:37], v[36:37], v[44:45]
    v_add_f32 v42, v42, v43
    v_pk_fma_f32 v[44:45], v[38:39], v[38:39], v[44:45]
    v_add_f32 v44, v44, v45
    v_permlane32_swap_b32 v42, v44
    v_add_f32 v42, v42, v44
    v_add_f32 v42, v42, v42 row_ror:8 {DP}
    v_add_f32 v42, v42, v42 row_ror:4 {DP}
    v_add_f32 v42, v42, v42 row_ror:2 {DP}
    v_add_f32 v42, v42, v42 row_ror:1 {DP}
    v_mov_b32 v43, v42
    v_permlane16_swap_b32 v42, v43
    v_add_f32 v42, v42, v43
    v_mul_f32 v42, 0x3b000000, v42
    v_mov_b32 v43, v42
    v_permlane32_swap_b32 v42, v43
    v_fma_f32 v43, -v42, v42, v43
    v_add_f32 v42, v42, v40
    v_max_f32 v43, 0, v43
    v_cvt_pk_bf16_f32 v42, v42, v43
    v_and_b32 v43, s42, v42
    v_lshlrev_b32 v42, 16, v42
    v_add_f32 v43, 0x3727c5ac, v43
    v_pk_add_f32 v[20:21], v[20:21], v[42:43] op_sel_hi:[1,0] neg_lo:[0,1] neg_hi:[0,1]
    v_cvt_pk_bf16_f32 v43, v43, v43
    v_and_b32 v43, s42, v43
    v_sqrt_f32 v43, v43
    v_cvt_pk_bf16_f32 v20, v20, v21
    v_cvt_pk_bf16_f32 v43, v43, v43
    v_and_b32 v43, s42, v43
    v_rcp_f32 v42, v43
    v_and_b32 v21, s42, v20
    v_lshlrev_b32 v20, 16, v20
    v_pk_mul_f32 v[20:21], v[20:21], v[42:43] op_sel_hi:[1,0]
    v_cvt_pk_bf16_f32 v20, v20, v20
    v_cvt_pk_bf16_f32 v21, v21, v21
    """)
    for k in range(5):
        if k < 4:
            n, p = k // 2, k % 2
            for r in range(4):
                t = 2 * p + r // 2
                g(f"v_and_b32 v{64+4*k+r}, v{20+n}, v{164+r%2} quad_perm:[{t},{t},{t},{t}] {DP}")
        if k >= 1:
            u = k - 1
            for hl in range(2):
                a = 96 + 8 * u + 4 * hl; d = 176 + 4 * hl
                g(f"{MF} v[{d}:{d+3}], v[{a}:{a+3}], v[{64+4*u}:{67+4*u}], {'0' if u == 0 else f'v[{d}:{d+3}]'}")
    g(f"""
    s_mov_b64 exec, s[58:59]
    ds_write_b128 v166, v[176:179] offset:{LP}
    ds_write_b128 v166, v[180:183] offset:{LP+64}
    s_mov_b64 exec, -1
    s_waitcnt lgkmcnt(0)
    s_barrier
    ds_read_b128 v[32:35], v10 offset:{LP}
    ds_read_b128 v[36:39], v10 offset:{LP+1024}
    s_waitcnt lgkmcnt(0)
    v_pk_add_f32 v[32:33], v[32:33], v[36:37]
    v_pk_add_f32 v[34:35], v[34:35], v[38:39]
    """)
    rs4(32)
    g(f"""
    v_add_f32 v32, v32, v32 row_ror:8 {DP}
    v_cvt_pk_bf16_f32 v32, v32, v32
    v_lshlrev_b32 v32, 16, v32
    v_add_f32 v32, v32, v22
    v_cvt_pk_bf16_f32 v32, v32, v32
    v_lshlrev_b32 v32, 16, v32
    v_max_f32 v32, 0, v32
    v_mul_f32 v32, v32, v32
    v_cvt_pk_bf16_f32 v32, v32, v32
    """)
    for k in range(5):
        if k < 4:
            for r in range(4):
                g(f"v_and_b32 v{64+4*k+r}, v32, v{4+r} quad_perm:[{k},{k},{k},{k}] {DP}")
        if k >= 1:
            u = k - 1
            for n in range(2):
                a = 128 + 16 * n + 4 * u; d = 176 + 4 * n
                g(f"{MF} v[{d}:{d+3}], v[{a}:{a+3}], v[{64+4*u}:{67+4*u}], {'0' if u == 0 else f'v[{d}:{d+3}]'}")
    for r in range(4): g(f"v_permlane32_swap_b32 v{176+r}, v{180+r}")
    for r in range(4): g(f"v_add_f32 v{176+r}, v{180+r}, v{176+r} row_shl:4 {DP}")
    for r in range(4): g(f"v_bfi_b32 v{176+r}, s61, v168, v{176+r}")
    g("""
    s_mov_b64 exec, s[40:41]
    global_store_dwordx4 v167, v[176:179], s[28:29] sc1
    L_fin:
    """)
    ts(8)
    ts_end()
    g("L_end:\ns_endpgm")
    for t in tail: g(t)
    body, nn = pad(L)
    ref = open(os.path.join(os.path.dirname(__file__), "..", "cdna_kernels", NAME + ".s.ref")).read().split("\n")
    hdr = [l for l in ref if l.startswith(";") and "@launch" not in l]
    out = hdr + [f"; @launch grid=(256,1,1) block=(320,1,1) lds={LDS}",
                 '.amdgcn_target "amdgcn-amd-amdhsa--gfx950"', ".text", f".globl {NAME}_kernel", ".p2align 8",
                 f".type {NAME}_kernel,@function", f"{NAME}_kernel:"]
    out += [("" if l.endswith(":") else "    ") + l for l in body]
    out += ['.section .rodata,"a"', ".p2align 6", f".amdhsa_kernel {NAME}_kernel",
            "  .amdhsa_next_free_vgpr 192", "  .amdhsa_next_free_sgpr 102", "  .amdhsa_accum_offset 192",
            "  .amdhsa_group_segment_fixed_size 0", "  .amdhsa_kernarg_size 104", "  .amdhsa_user_sgpr_count 2",
            "  .amdhsa_user_sgpr_kernarg_segment_ptr 1", "  .amdhsa_system_sgpr_workgroup_id_x 1",
            "  .amdhsa_float_denorm_mode_32 3", ".end_amdhsa_kernel", ""]
    return "\n".join(out)

if __name__ == "__main__":
    kw = {}
    outp = sys.argv[1]
    for a in sys.argv[2:]:
        k, v = a.split("=")
        kw[k] = int(v) if v.lstrip('-').isdigit() else v
    open(outp, "w").write(gen(**kw))
```

```python
import sys, os
sys.path.insert(0, os.path.dirname(__file__))
from hz import pad
NAME = "sequential_preLN__sliding_block_cached__dense_activation_squared_relu__decode"

DEF = dict(ts=0, nt="nt", thr=4, wpos=2, spin=200000, ffn_early=0, fpre=0, b4=1, warm=0, kvw=0, b0=3, kpre=0, vpre=8, qfast=3, ofast=1, qgap=8, pfw=2, pff=1, pfg=128, wnt=0, pfnt=0, pfpos=1, wreg=2, pffe=0, forder=0, prio=1, qwait=1, pad=0, amp=0, xchk=0, dg='-', qnt=0, knt=1, vnt=1, fnew=1, ygrp=0, rgrp=0, yfirst=1, rdel=0, wpp=1, wgap=2, rpp=1, rgap=3, fthr=0, ywait=0, dry=7, lay=3, cpf=1, cpe=1, dsp=16, vthr=-1)
def gen(**kw):
    O = dict(DEF); O.update(kw)
    NT = O['nt'].replace('+', ' ') if O['nt'] != '-' else ''
    THR = O['thr']
    L = []
    tail = []
    def g(s):
        for l in s.strip('\n').split('\n'):
            if l.strip(): L.append(l.strip())
    QP, OP, ML, YP, FP, TSB = 0x10000, 0x30000, 0x50000, 0x60000, 0x70000, 0x100000
    SLOW = 0x80000
    LQ, LM, LO, LY, LH, LP = 0, 256, 512, 2560, 4608, 6656
    LDS = 8704
    nts = [0]
    cur = ['w0']
    DG = O['dg'].split('_') if O['dg'] != '-' else None
    ndg = [0]
    def ts(i):
        if O['ts']: g(f"s_memrealtime s[{64+2*i}:{65+2*i}]")
        if DG and i == 0: g("s_memrealtime s[96:97]\ns_mov_b32 s94, 0")
        if DG and int(DG[1]) == i and i != 8 and (DG[0] == cur[0] or (DG[0] == 'att' and cur[0] in ('pl', 'wo', 'ffn'))): g("s_memrealtime s[98:99]\ns_mov_b32 s94, 1")
        if DG and int(DG[1]) == 8 and i == 7 and DG[0] == cur[0]: g("s_mov_b32 s94, 1")
        if DG and int(DG[1]) == 8 and i == 8: g("s_memrealtime s[98:99]")
    def ts_end():
        if DG:
            ndg[0] += 1; n = ndg[0]
            g(f"""
            s_cmp_eq_u32 s94, 0
            s_cbranch_scc1 L_dge{n}
            s_waitcnt lgkmcnt(0)
            s_sub_u32 s98, s98, s96
            s_mul_i32 s98, s98, {O['amp']}
            s_add_u32 s96, s96, s98
            L_dg{n}:
            s_memrealtime s[98:99]
            s_waitcnt lgkmcnt(0)
            s_sub_u32 s98, s98, s96
            s_cmp_lt_i32 s98, 0
            s_cbranch_scc1 L_dg{n}
            L_dge{n}:
            """)
        if not O['ts']: return
        g(f"""
        s_waitcnt lgkmcnt(0)
        s_mov_b64 exec, 1
        s_lshl_b32 s60, s2, 3
        s_add_u32 s60, s60, s3
        s_lshl_b32 s60, s60, 7
        s_add_u32 s60, s60, {TSB}
        v_mov_b32 v8, s60
        """)
        for i in range(16):
            g(f"v_mov_b32 v9, s{64+2*i}")
            g(f"global_store_dword v8, v9, s[28:29] offset:{4*i}")
    cnt = [0]
    def poll(loads, check, name):
        cnt[0] += 1; n = f"{name}{cnt[0]}"
        g(f"s_mov_b32 s36, {O['spin']}")
        g(f"L_{n}:")
        g(loads); g("s_waitcnt vmcnt(0)"); g(check)
        g(f"s_cbranch_vccnz L_{n}_r")
        g(f"L_{n}_d:")
        tail.append(f"L_{n}_r:\ns_sub_u32 s36, s36, 1\ns_cbranch_scc0 L_{n}\ns_branch L_{n}_d")
    def ppoll(n, ldA, ckA, ldB, ckB, nl, gap, limit, fallback):
        g(f"s_mov_b32 s37, {limit}")
        g(ldA)
        if gap: g(f"s_sleep {gap}")
        g(f"s_branch L_{n}_e\nL_{n}_l:")
        g(ldA)
        g(f"s_waitcnt vmcnt({nl})"); g(ckB)
        g(f"s_cbranch_vccz L_{n}_b")
        g(f"s_sub_u32 s37, s37, 1\ns_cbranch_scc1 L_{n}_x\nL_{n}_e:")
        g(ldB)
        g(f"s_waitcnt vmcnt({nl})"); g(ckA)
        g(f"s_cbranch_vccnz L_{n}_l")
        tail.append(f"L_{n}_x:\ns_waitcnt vmcnt(0)\ns_branch {fallback}")
    def chk(regtags, acc):
        s = []
        rs = [r for r, t in regtags]
        for r, t in regtags: s.append(f"v_xor_b32 v{r}, v{r}, v{t}")
        s.append(f"v_or3_b32 v{acc}, v{rs[0]}, v{rs[1]}, v{rs[2]}")
        k = 3
        while k + 1 < len(rs):
            s.append(f"v_or3_b32 v{acc}, v{acc}, v{rs[k]}, v{rs[k+1]}"); k += 2
        if k < len(rs): s.append(f"v_or_b32 v{acc}, v{acc}, v{rs[k]}")
        s.append(f"v_and_b32 v{acc}, s61, v{acc}")
        s.append(f"v_cmp_ne_u32 vcc, 0, v{acc}")
        return "\n".join(s)
    def xrow(op, r, t, rors=(8, 4, 2, 1)):
        for k in rors: g(f"{op} v{r}, v{r}, v{r} row_ror:{k} row_mask:0xf bank_mask:0xf")
        for sw in (16, 32):
            g(f"v_mov_b32 v{t}, v{r}")
            g(f"v_permlane{sw}_swap_b32 v{r}, v{t}")
            g(f"{op} v{r}, v{r}, v{t}")
    def rs4(a):
        g(f"""
        v_permlane16_swap_b32 v{a}, v{a+1}
        v_permlane16_swap_b32 v{a+2}, v{a+3}
        v_add_f32 v{a}, v{a}, v{a+1}
        v_add_f32 v{a+2}, v{a+2}, v{a+3}
        v_permlane32_swap_b32 v{a}, v{a+2}
        v_add_f32 v{a}, v{a}, v{a+2}
        """)
    def masks():
        g("""
        v_and_b32 v8, 1, v0
        v_lshlrev_b32 v8, 4, v8
        v_mov_b32 v9, 0xffff
        v_lshlrev_b32 v9, v8, v9
        v_and_b32 v3, 3, v0
        v_lshrrev_b32 v8, 1, v0
        v_and_or_b32 v3, v8, 4, v3
        v_lshrrev_b32 v8, 1, v3
        v_cmp_eq_u32 vcc, 0, v8
        v_cndmask_b32 v4, 0, v9, vcc
        v_cmp_eq_u32 vcc, 1, v8
        v_cndmask_b32 v5, 0, v9, vcc
        v_cmp_eq_u32 vcc, 2, v8
        v_cndmask_b32 v6, 0, v9, vcc
        v_cmp_eq_u32 vcc, 3, v8
        v_cndmask_b32 v7, 0, v9, vcc
        """)
    def comp_mid():
        ts(1)
        masks()
        for r in range(160, 176): g(f"v_mov_b32 v{r}, 0")
        g(f"""
        v_lshlrev_b32 v12, 6, v1
        v_and_b32 v9, 3, v0
        v_lshl_add_u32 v12, v9, 4, v12
        s_lshl_b32 s35, s38, 3
        v_mov_b32 v13, s35
        v_lshl_add_u32 v14, v1, 3, v3
        s_lshl_b32 s35, s38, 9
        v_lshl_add_u32 v14, v14, 4, s35
        s_mov_b32 s62, 0x55555555
        s_mov_b32 s63, 0x55555555
        s_mov_b32 s46, 0x000f000f
        s_mov_b32 s47, 0x000f000f
        s_lshl_b64 s[48:49], s[46:47], 4
        s_lshl_b64 s[50:51], s[46:47], 8
        s_lshl_b64 s[52:53], s[46:47], 12
        """)
    def comp_disp():
        g("""
        s_cmp_lt_u32 s33, 16
        s_cbranch_scc1 L_att_wo
        s_sub_u32 s39, s2, 128
        s_cmp_lt_u32 s39, 43
        s_cbranch_scc1 L_att_ffn
        """)
    def kvloads(thr, k0, k1=16):
        for t in range(k0, min(8, k1)):
            if t >= thr: g(f"s_waitcnt vmcnt({thr-1})")
            g(f"global_load_dwordx4 v[{32+4*t}:{35+4*t}], v11, s[6:7] offset:{1024*t-4096} {NT if O['knt'] else ''}")
        if k0 < 8 <= k1: ts(10)
        for t in range(max(k0 - 8, 0), min(O['vpre'], k1 - 8)):
            if t < (O['vthr'] if O['vthr'] >= 0 else thr): g(f"s_waitcnt vmcnt({thr-1})")
            vload(t)
    def vload(t): g(f"global_load_dwordx4 v[{64+4*t}:{67+4*t}], v10, s[8:9] offset:{1024*t-4096} {NT if O['vnt'] else ''}")
    CPF = f'''
        s_cmp_lt_u32 s33, {O['cpf']}
        s_cbranch_scc0 L_nocpf
        s_getpc_b64 s[56:57]
        L_pc:
        s_lshl_b32 s35, s38, 12
        v_lshl_add_u32 v8, v0, 6, s35
        v_min_u32 v8, L_codeend-L_pc-4, v8
        global_load_dword v188, v8, s[56:57]
        L_nocpf:
        ''' if O['cpf'] and not O['cpe'] else ''
    def comp_head():
        g(f"""
        L_comp:
        s_sub_u32 s38, s3, 1
        {CPF}
        v_lshrrev_b32 v8, 2, v2
        v_lshlrev_b32 v8, 8, v8
        v_lshl_add_u32 v8, v1, 6, v8
        v_and_b32 v9, 3, v0
        v_lshl_add_u32 v11, v9, 4, v8
        v_lshlrev_b32 v10, 4, v0
        s_lshl_b32 s35, s30, 20
        s_lshl_b32 s37, s31, 15
        s_add_u32 s35, s35, s37
        s_lshl_b32 s37, s38, 13
        s_add_u32 s35, s35, s37
        s_add_u32 s35, s35, {786432+4096}
        s_waitcnt lgkmcnt(0)
        s_load_dword s34, s[28:29], 0
        s_add_u32 s6, s6, s35
        s_addc_u32 s7, s7, 0
        s_add_u32 s8, s8, s35
        s_addc_u32 s9, s9, 0
        """)
        if O['lay'] == 3:
            sv = cur[0]; cur[0] = 'att'
            comp_mid()
            if O['b0']: g("s_barrier")
            kvloads(THR, 0, O['dsp'])
            comp_disp()
            g("s_branch L_comp2")
            cur[0] = sv
        elif O['lay']:
            if O['b0']: g("s_barrier")
            for t in range(THR):
                g(f"global_load_dwordx4 v[{32+4*t}:{35+4*t}], v11, s[6:7] offset:{1024*t-4096} {NT if O['knt'] else ''}")
            g("s_branch L_comp2")
    MF = "v_mfma_f32_16x16x32_bf16"
    DP = "row_mask:0xf bank_mask:0xf"
    ts(0)
    if O['pad']: g("s_memrealtime s[96:97]")
    g("""
    s_cmp_ge_u32 s2, 256
    s_cbranch_scc1 L_end
    s_load_dwordx16 s[4:19], s[0:1], 0
    s_load_dwordx8 s[20:27], s[0:1], 64
    s_load_dwordx2 s[28:29], s[0:1], 96
    v_lshrrev_b32 v1, 6, v0
    """)
    if O['cpf'] and O['cpe']:
        g(f"""
        v_lshlrev_b32 v8, 6, v0
        v_readfirstlane_b32 s3, v1
        s_getpc_b64 s[56:57]
        L_pc:
        v_min_u32 v8, L_codeend-L_pc-4+4096, v8
        s_cmp_lt_u32 s2, {8*O['cpf']}
        s_cselect_b32 s35, s3, 0
        s_cmp_eq_u32 s35, 0
        s_cbranch_scc1 L_nocpf
        global_load_dword v188, v8, s[56:57] offset:-4096
        L_nocpf:
        v_and_b32 v0, 63, v0
        """)
    else: g("v_and_b32 v0, 63, v0\nv_readfirstlane_b32 s3, v1")
    g("""
    v_lshrrev_b32 v1, 4, v0
    v_and_b32 v2, 15, v0
    s_and_b32 s32, s2, 7
    s_lshr_b32 s33, s2, 3
    s_and_b32 s30, s33, 3
    s_lshl_b32 s35, s32, 2
    s_add_u32 s30, s30, s35
    s_lshr_b32 s31, s33, 2
    s_mov_b32 s40, 0x0f0f0f0f
    s_mov_b32 s41, 0x0f0f0f0f
    s_mov_b32 s42, 0xffff0000
    s_mov_b32 s43, 0x3fb8aa3b
    s_movk_i32 s61, 0xff
    s_cmp_lg_u32 s3, 0
    """)
    if O['lay'] == 1:
        g("s_cbranch_scc0 L_w0")
        comp_head()
        g("L_w0:")
    else: g("s_cbranch_scc1 L_comp")
    if O['prio']: g("s_setprio 3")
    g(f"""
    v_lshlrev_b32 v10, 4, v0
    s_lshl_b32 s35, s31, 7
    v_lshl_add_u32 v11, v0, 1, s35
    v_mov_b32 v24, 0
    v_lshlrev_b32 v25, 17, v1
    v_lshl_add_u32 v25, v2, 4, v25
    s_lshl_b32 s35, s31, 19
    s_lshl_b32 s37, s30, 8
    s_add_u32 s35, s35, s37
    s_waitcnt lgkmcnt(0)
    s_load_dword s34, s[28:29], 0
    global_load_dwordx4 v[12:15], v10, s[4:5]
    global_load_short_d16_hi v24, v11, s[4:5]
    s_add_u32 s10, s10, s35
    s_addc_u32 s11, s11, 0
    """)
    for t in range(16):
        g(f"global_load_dwordx4 v[{32+4*t}:{35+4*t}], v25, s[10:11] {NT if O['qnt'] else ''}")
        if t < 15: g("v_add_u32 v25, 0x2000, v25")
    if O['lay'] >= 2:
        g("s_branch L_w0")
        comp_head()
        g("L_w0:")
    NW = 0
    if O['warm']:
        g("v_lshlrev_b32 v30, 16, v0\ns_mov_b64 exec, 1\nglobal_load_dword v169, v30, s[28:29] offset:128"); NW += 1
    if O['warm'] >= 2:
        g(f"""
        global_load_short_d16 v169, v30, s[18:19]
        global_load_short_d16 v169, v30, s[22:23]
        global_load_short_d16 v169, v30, s[24:25]
        s_mov_b64 exec, {(1 << 21) - 1}
        global_load_dword v169, v30, s[16:17]
        global_load_dword v169, v30, s[20:21]
        s_lshl_b32 s35, s32, 19
        v_add_u32 v30, s35, v30
        s_mov_b64 exec, 0xff
        global_load_dword v169, v30, s[12:13]
        """); NW += 6
    if O['warm']: g("s_mov_b64 exec, -1")
    if O['qfast'] or O['ofast']:
        g(f"""
        s_lshl_b32 s35, s30, 12
        s_lshl_b32 s37, s31, 9
        s_add_u32 s35, s35, s37
        s_add_u32 s35, s35, {QP}
        v_and_b32 v30, 3, v0
        v_lshl_add_u32 v30, v30, 7, s35
        v_lshrrev_b32 v31, 2, v0
        v_lshl_add_u32 v30, v31, 17, v30
        s_lshl_b32 s35, s30, 7
        s_add_u32 s35, s35, {ML}
        v_writelane_b32 v30, s35, 8
        s_mov_b64 exec, 0x1ff
        global_load_dword v168, v30, s[28:29] sc1
        s_mov_b64 exec, -1
        """); NW += 1
    if O['b0'] == 1: g("s_barrier")
    ts(1)
    masks()
    g(f"""
    s_lshl_b32 s35, s30, 12
    s_add_u32 s35, s35, {QP}
    s_add_u32 s44, s28, s35
    s_addc_u32 s45, s29, 0
    s_lshl_b32 s35, s31, 9
    v_lshl_add_u32 v26, v1, 3, v3
    v_lshl_add_u32 v27, v26, 4, s35
    s_waitcnt vmcnt({16+NW})
    """)
    if O['b0'] == 2: g("s_barrier")
    ts(2)
    for i in range(4):
        g(f"v_lshlrev_b32 v{16+2*i}, 16, v{12+i}")
        g(f"v_and_b32 v{17+2*i}, s42, v{12+i}")
    g("""
    v_pk_add_f32 v[8:9], v[16:17], v[18:19]
    v_pk_add_f32 v[12:13], v[20:21], v[22:23]
    v_pk_add_f32 v[8:9], v[8:9], v[12:13]
    v_add_f32 v8, v8, v9
    """)
    xrow("v_add_f32", 8, 9)
    g("v_mul_f32 v8, 0x3b000000, v8")
    for i in range(4):
        g(f"v_pk_add_f32 v[{16+2*i}:{17+2*i}], v[{16+2*i}:{17+2*i}], v[8:9] op_sel_hi:[1,0] neg_lo:[0,1] neg_hi:[0,1]")
    g("""
    v_pk_mul_f32 v[12:13], v[16:17], v[16:17]
    v_pk_fma_f32 v[12:13], v[18:19], v[18:19], v[12:13]
    v_pk_fma_f32 v[12:13], v[20:21], v[20:21], v[12:13]
    v_pk_fma_f32 v[12:13], v[22:23], v[22:23], v[12:13]
    v_add_f32 v12, v12, v13
    """)
    xrow("v_add_f32", 12, 13)
    g("""
    v_mul_f32 v12, 0x3b000000, v12
    v_cvt_pk_bf16_f32 v8, v8, v12
    v_and_b32 v12, s42, v8
    v_lshlrev_b32 v8, 16, v8
    v_add_f32 v12, 0x3727c5ac, v12
    v_sub_f32 v24, v24, v8
    v_cvt_pk_bf16_f32 v12, v12, v24
    v_and_b32 v24, s42, v12
    v_lshlrev_b32 v12, 16, v12
    v_sqrt_f32 v12, v12
    v_cvt_pk_bf16_f32 v12, v12, v12
    v_lshlrev_b32 v12, 16, v12
    v_rcp_f32 v12, v12
    v_mul_f32 v24, v24, v12
    v_cvt_pk_bf16_f32 v24, v24, v24
    """)
    for t in range(16):
        if O['b0'] == 3 + t: g("s_barrier")
        for r in range(4):
            g(f"v_and_b32 v{96+4*t+r}, v24, v{4+r} row_newbcast:{t} {DP}")
        if t >= 1:
            u = t - 1
            g(f"s_waitcnt vmcnt({15-u+NW})")
            g(f"{MF} v[160:163], v[{32+4*u}:{35+4*u}], v[{96+4*u}:{99+4*u}], {'0' if u == 0 else 'v[160:163]'}")
    g(f"""
    s_waitcnt vmcnt({NW}) lgkmcnt(0)
    {MF} v[160:163], v[92:95], v[156:159], v[160:163]
    s_add_u32 s34, s34, 1
    v_add_u32 v26, s34, v26
    v_and_b32 v28, 31, v0
    v_add_u32 v28, s34, v28
    v_and_b32 v28, s61, v28
    s_mov_b64 exec, s[40:41]
    """)
    for r in range(4): g(f"v_add_u32 v{160+r}, 0x80, v{160+r}")
    for r in range(4): g(f"v_bfi_b32 v{160+r}, s61, v26, v{160+r}")
    if O['qfast']:
        g("global_store_dwordx4 v27, v[160:163], s[44:45]")
    else:
        g("global_store_dwordx4 v27, v[160:163], s[44:45] sc1")
    g("s_mov_b64 exec, -1")
    QSLOW = f"s_mov_b64 exec, s[40:41]\nglobal_store_dwordx4 v31, v[160:163], s[44:45] sc1\ns_mov_b64 exec, -1"
    ts(3)
    PNT = 'nt' if O['pfnt'] else ''
    G = O['pfg']; sh = 6 if G == 64 else 7
    def pfw():
        if O['pfw']:
            if O['pfw'] == 1:
                g(f"""
                s_lshr_b32 s35, s33, 3
                s_lshl_b32 s35, s35, 17
                s_and_b32 s37, s33, 7
                s_lshl_b32 s37, s37, 13
                s_add_u32 s35, s35, s37
                s_add_u32 s35, s35, 0x10000
                """); nb = 8192
            else:
                g("s_lshl_b32 s35, s33, 14"); nb = 16384
            g(f"""
            s_lshl_b32 s37, s32, 19
            s_add_u32 s35, s35, s37
            v_lshl_add_u32 v8, v0, {sh}, s35
            """)
            for k in range(nb // (64 * G)):
                if k: g(f"v_add_u32 v8, {64*G}, v8")
                g(f"global_load_dword v{176+k}, v8, s[12:13] {PNT}")

    if O['pfpos'] == 2: pfw()
    def qissue(b, a):
        for u in range(4): g(f"global_load_dwordx4 v[{b+4*u}:{b+3+4*u}], v{a}, s[44:45] offset:{1024*u} sc1")
    def qsum(b):
        g(f"""
        v_pk_add_f32 v[164:165], v[{b}:{b+1}], v[{b+4}:{b+5}]
        v_pk_add_f32 v[166:167], v[{b+2}:{b+3}], v[{b+6}:{b+7}]
        v_pk_add_f32 v[172:173], v[{b+8}:{b+9}], v[{b+12}:{b+13}]
        v_pk_add_f32 v[174:175], v[{b+10}:{b+11}], v[{b+14}:{b+15}]
        """)
    if O['qfast']: qissue(32, 10)
    g(f"""
    v_bfe_u32 v8, v0, 3, 2
    v_lshlrev_b32 v8, 6, v8
    v_lshrrev_b32 v9, 5, v0
    v_lshl_add_u32 v8, v9, 5, v8
    v_and_b32 v9, 7, v0
    v_lshl_add_u32 v29, v9, 1, v8
    v_add_u32 v31, {SLOW}, v27
    """)
    if O['qfast']:
        NS = O['qfast'] + 1
        g(f"s_mov_b32 s36, {O['spin']}")
        for p in range(1, NS):
            if O['qgap']: g(f"s_sleep {O['qgap']}")
            qissue(32 + 16 * p, 10)
        ts(4)
        g("L_qp:")
        for p in range(NS):
            b = 32 + 16 * p
            g(f"s_waitcnt vmcnt({4*(NS-1)})")
            g(chk([(b + i, 28) for i in range(16)], 8))
            g(f"s_cbranch_vccz L_qok{p}")
            if p == 0:
                g(f"""
                s_sub_u32 s36, s36, 1
                s_cbranch_scc1 L_qok0
                s_and_b32 s35, s36, 7
                s_cselect_b32 s35, 0, {SLOW}
                v_add_u32 v30, s35, v10
                s_cbranch_scc0 L_qs
                L_qs_d:
                """)
                tail.append(f"L_qs:\n{QSLOW}\ns_waitcnt vmcnt(0)\n" + "\n".join(
                    f"global_load_dwordx4 v[{32+16*pp+4*u}:{35+16*pp+4*u}], v10, s[44:45] offset:{1024*u} sc1" for pp in range(1, NS) for u in range(4)) + "\ns_branch L_qs_d")
            qissue(b, 30 if p == 0 else 10)
        g("s_branch L_qp")
        for p in range(NS - 1, -1, -1):
            g(f"L_qok{p}:")
            qsum(32 + 16 * p)
            if p: g("s_branch L_qd")
        g("L_qd:")
    else:
        if O['qwait']: g("s_waitcnt vmcnt(0)")
        ts(4)
        poll("\n".join(f"global_load_dwordx4 v[{32+4*u}:{35+4*u}], v10, s[44:45] offset:{1024*u} sc1" for u in range(4)),
             chk([(32 + i, 28) for i in range(16)], 8), "q")
        qsum(32)
    ts(5)
    if O['ts']: g(f"s_sub_u32 s88, {O['spin']}, s36")
    g(f"""
    v_pk_add_f32 v[164:165], v[164:165], v[172:173]
    v_pk_add_f32 v[166:167], v[166:167], v[174:175]
    v_permlane32_swap_b32 v164, v166
    v_permlane32_swap_b32 v165, v167
    v_pk_add_f32 v[164:165], v[164:165], v[166:167]
    v_cvt_pk_bf16_f32 v164, v164, v165
    ds_write_b16 v29, v164 offset:{LQ}
    ds_write_b16_d16_hi v29, v164 offset:{LQ+16}
    s_waitcnt lgkmcnt(0)
    s_barrier
    {QSLOW if O['qfast'] else ''}
    """)
    if O['pfpos'] == 1: pfw()
    g(f"""
    s_lshl_b32 s35, s30, 7
    s_lshl_b32 s37, s31, 4
    s_add_u32 s35, s35, s37
    s_add_u32 s35, s35, {ML}
    v_mov_b32 v27, s35
    v_and_b32 v8, 3, v0
    v_lshlrev_b32 v8, 3, v8
    v_mov_b32 v13, s34
    v_mov_b32 v15, s34
    s_barrier
    ds_read_b64 v[10:11], v8 offset:{LM}
    s_waitcnt lgkmcnt(0)
    v_max_f32 v12, v10, v10 quad_perm:[1,0,3,2] {DP}
    v_max_f32 v12, v12, v12 quad_perm:[2,3,0,1] {DP}
    v_sub_f32 v10, v10, v12
    v_mul_f32 v10, s43, v10
    v_exp_f32 v10, v10
    v_mul_f32 v14, v10, v11
    v_add_f32 v14, v14, v14 quad_perm:[1,0,3,2] {DP}
    v_add_f32 v14, v14, v14 quad_perm:[2,3,0,1] {DP}
    s_mov_b64 exec, 1
    """)
    if O['ofast']:
        g("global_store_dwordx4 v27, v[12:15], s[28:29]")
        g(f"v_add_u32 v27, {SLOW}, v27")
    g("global_store_dwordx4 v27, v[12:15], s[28:29] sc1")
    ts(6)
    g("s_mov_b64 exec, -1")
    if O['pfpos'] == 0: pfw()
    if O['pff']:
        g(f"""
        s_min_u32 s35, s32, 3
        s_mul_i32 s54, s32, 5
        s_add_u32 s54, s54, s35
        s_cmp_lt_u32 s32, 3
        s_cselect_b32 s55, 5, 4
        s_lshl_b32 s55, s55, 6
        s_and_b32 s56, s33, 15
        s_lshl_b32 s35, s54, 6
        s_mul_i32 s37, s56, {32*2752}
        s_add_u32 s35, s35, s37
        v_and_b32 v8, 3, v0
        v_lshlrev_b32 v8, 7, v8
        v_min_u32 v8, s55, v8
        v_lshrrev_b32 v9, 2, v0
        v_mul_u32_u24 v9, 2752, v9
        v_add3_u32 v8, v8, v9, s35
        v_add_u32 v9, {16*2752}, v8
        s_lshl_b32 s35, s54, 15
        s_add_u32 s55, s55, 64
        s_lshl_b32 s55, s55, 5
        s_mul_i32 s37, s56, s55
        s_add_u32 s35, s35, s37
        s_sub_u32 s55, s55, 64
        v_lshlrev_b32 v10, 7, v0
        v_add_u32 v11, 8192, v10
        v_min_u32 v11, s55, v11
        v_add_u32 v10, s35, v10
        v_add_u32 v11, s35, v11
        """)
    PF = [f"global_load_dword v20, v8, s[16:17] {PNT}", f"global_load_dword v21, v9, s[16:17] {PNT}",
          f"global_load_dword v22, v10, s[20:21] {PNT}", f"global_load_dword v23, v11, s[20:21] {PNT}"]
    if O['pff'] == 2: PF = PF[:2]
    if O['pff'] and O['pffe']:
        g("s_cmp_lt_u32 s33, 16\ns_cbranch_scc1 L_nopf0\n" + "\n".join(PF[:O['pffe']]) + "\nL_nopf0:")
    g("s_barrier\ns_barrier")
    if O['pff'] and PF[O['pffe']:]:
        g("s_cmp_lt_u32 s33, 16\ns_cbranch_scc1 L_nopf\n" + "\n".join(PF[O['pffe']:]) + "\nL_nopf:")
    if O['dry'] & 1:
        g("""
        s_sub_u32 s35, s2, 128
        s_cmp_lt_u32 s35, 43
        s_cbranch_scc0 L_w0e
        v_mov_b32 v167, 0
        s_mov_b64 s[40:41], 0
        s_mov_b64 s[48:49], 0
        s_mov_b64 s[58:59], 0
        s_mov_b64 exec, 0
        s_branch L_ftail
        L_w0e:
        """)
    g("s_waitcnt vmcnt(0)")
    ts_end()
    g("s_endpgm")
    if O['lay'] == 0: comp_head()
    else: g('L_comp2:')
    nl = 0
    if O['kvw']:
        g("s_mov_b64 exec, 1\nglobal_load_dword v188, v10, s[6:7]\nglobal_load_dword v189, v10, s[8:9]\ns_mov_b64 exec, -1")
    for t in range(O['kpre']):
        g(f"global_load_dwordx4 v[{32+4*t}:{35+4*t}], v11, s[6:7] offset:{1024*t-4096} {NT if O['knt'] else ''}"); nl += 1
    if O['lay'] != 3:
        comp_mid(); comp_disp()

    def w_setup(role):
        if role == 'wo':
            g(f"""
            s_and_b32 s54, s33, 1
            s_lshl_b32 s35, s32, 1
            s_add_u32 s56, s54, s35
            s_lshl_b32 s54, s56, 1
            s_lshr_b32 s35, s38, 1
            s_add_u32 s54, s54, s35
            s_lshr_b32 s55, s33, 1
            s_lshl_b32 s35, s54, 17
            s_and_b32 s37, s38, 1
            s_lshl_b32 s37, s37, 14
            s_add_u32 s35, s35, s37
            s_lshl_b32 s37, s55, 7
            s_add_u32 s35, s35, s37
            s_add_u32 s35, s35, 4096
            s_add_u32 s12, s12, s35
            s_addc_u32 s13, s13, 0
            v_lshrrev_b32 v8, 3, v2
            v_lshlrev_b32 v8, 5, v8
            v_and_b32 v9, 1, v1
            v_lshl_add_u32 v8, v9, 3, v8
            v_lshrrev_b32 v9, 1, v1
            v_add_u32 v8, v8, v9
            v_lshlrev_b32 v8, 10, v8
            v_and_b32 v9, 7, v0
            v_lshl_add_u32 v16, v9, 4, v8
            v_add_u32 v17, 0x10000, v16
            """)
        if role == 'ffn':
            g(f"""
            s_min_u32 s35, s32, 3
            s_mul_i32 s39, s32, 5
            s_add_u32 s39, s39, s35
            s_add_u32 s39, s39, s33
            s_sub_u32 s39, s39, 16
            s_mul_i32 s35, s38, {128*2752}
            s_lshl_b32 s37, s39, 6
            s_add_u32 s35, s35, s37
            s_add_u32 s16, s16, s35
            s_addc_u32 s17, s17, 0
            s_lshl_b32 s35, s39, 15
            s_lshl_b32 s37, s38, 8
            s_add_u32 s35, s35, s37
            s_add_u32 s20, s20, s35
            s_addc_u32 s21, s21, 0
            v_lshrrev_b32 v8, 2, v2
            v_lshl_add_u32 v18, v8, 3, v1
            v_mul_u32_u24 v8, 2752, v18
            v_and_b32 v9, 3, v0
            v_lshl_add_u32 v16, v9, 4, v8
            v_lshrrev_b32 v8, 3, v2
            v_lshl_add_u32 v8, v1, 1, v8
            v_lshlrev_b32 v8, 12, v8
            v_and_b32 v9, 7, v0
            v_lshl_add_u32 v17, v9, 4, v8
            v_lshl_add_u32 v19, v1, 3, v9
            s_lshl_b32 s35, s39, 6
            v_lshl_add_u32 v19, v19, 1, s35
            v_and_b32 v8, 1, v0
            v_lshl_add_u32 v18, v8, 2, v18
            v_bfe_u32 v8, v0, 1, 1
            v_lshl_add_u32 v18, v8, 5, v18
            s_lshl_b32 s35, s38, 8
            v_lshl_add_u32 v18, v18, 1, s35
            v_mov_b32 v20, 0
            v_mov_b32 v21, 0
            v_mov_b32 v22, 0
            """)
    def w_loads(role, part):
        out = []
        NT = 'nt' if O['wnt'] else ''
        if role == 'wo' and part == 0:
            for n in range(2):
                for t in range(4):
                    r = 96 + 16 * n + 4 * t
                    out.append(f"global_load_dwordx4 v[{r}:{r+3}], v{16+n}, s[12:13] offset:{2048*t-4096} {NT}")
        if role == 'ffn' and part == 0:
            for n in range(2):
                for t in range(4):
                    r = 96 + 16 * n + 4 * t
                    off = (64 * n + 32 * (t // 2) + 4 * (t % 2)) * 2752
                    out.append(f"v_add_u32 v23, {off}, v16\nglobal_load_dwordx4 v[{r}:{r+3}], v23, s[16:17] {NT}")
        if role == 'ffn' and part == 1:
            out.append("global_load_short_d16_hi v20, v18, s[4:5]")
            out.append("global_load_short_d16_hi v21, v18, s[4:5] offset:128")
            out.append("global_load_short_d16_hi v22, v19, s[18:19]")
            for n in range(2):
                for t in range(4):
                    r = 128 + 16 * n + 4 * t
                    out.append(f"global_load_dwordx4 v[{r}:{r+3}], v17, s[20:21] offset:{1024*t+128*n} {NT}")
        return out

    def attention(role):
        cur[0] = role
        w_setup(role)
        thr = O['fthr'] if role == 'ffn' and O['fthr'] else THR
        if O['b0'] and not O['lay']: g("s_barrier")
        kvloads(thr, O['dsp'] if O['lay'] == 3 else THR if O['lay'] else O['kpre'])
        after = 0
        W = w_loads(role, 0) + w_loads(role, 1)
        if role == 'ffn' and O['forder']: W = w_loads(role, 1) + w_loads(role, 0)
        early = O['ffn_early'] if role == 'ffn' else 0
        for x in W[:early]: g(x); after += 1
        W = W[early:]
        late = []
        if role == 'ffn' and O['fpre'] >= 0: late = W[O['fpre']:]; W = W[:O['fpre']]
        inpv = []
        if role == 'wo' and O['pfw'] == 1: inpv = W[:4]; late = W[4:]; W = []
        if role == 'wo' and O['pfw'] == 2:
            if O['wreg'] == 0: late = W; W = []
            if O['wreg'] == 2: inpv = W[:4]; late = W[4:]; W = []
            if O['wreg'] == 3: inpv = W[4:]; W = W[:4]
        ts(2)
        g("s_barrier")
        ts(3)
        for u in range(4):
            g(f"s_mov_b64 exec, s[{46+2*u}:{47+2*u}]")
            g(f"ds_read_b128 v[{160+4*u}:{163+4*u}], v12 offset:{LQ}")
        g("s_mov_b64 exec, -1")
        for t in range(O['vpre'], 8): vload(t)
        if O['wpos'] == 0:
            for x in W: g(x); after += 1
            W = []
        g(f"s_waitcnt vmcnt({8+after}) lgkmcnt(0)")
        for u in range(4):
            for c in range(2):
                t = 4 * c + u
                g(f"{MF} v[{176+4*c}:{179+4*c}], v[{32+4*t}:{35+4*t}], v[{160+4*u}:{163+4*u}], {'0' if u == 0 else f'v[{176+4*c}:{179+4*c}]'}")
        g("s_add_u32 s34, s34, 1")
        if O['wpos'] == 1:
            for x in W: g(x); after += 1
            W = []
        for c in range(2):
            g(f"v_mov_b32 v{24+c}, v{176+4*c} quad_perm:[0,0,0,0] {DP}")
        for r in range(1, 4):
            for c in range(2):
                g(f"v_add_f32 v{24+c}, v{176+4*c+r}, v{24+c} quad_perm:[{r},{r},{r},{r}] {DP}")
        g(f"""
        v_cvt_pk_bf16_f32 v24, v24, v25
        v_and_b32 v25, s42, v24
        v_lshlrev_b32 v24, 16, v24
        v_mul_f32 v24, 0x3db504f3, v24
        v_mul_f32 v25, 0x3db504f3, v25
        v_cvt_pk_bf16_f32 v24, v24, v25
        v_and_b32 v25, s42, v24
        v_lshlrev_b32 v24, 16, v24
        v_max_f32 v26, v24, v25
        """)
        xrow("v_max_f32", 26, 27, (4, 8))
        g("""
        v_sub_f32 v28, v24, v26
        v_sub_f32 v29, v25, v26
        v_mul_f32 v28, s43, v28
        v_mul_f32 v29, s43, v29
        v_exp_f32 v28, v28
        v_exp_f32 v29, v29
        v_add_f32 v27, v28, v29
        """)
        xrow("v_add_f32", 27, 28, (4, 8))
        g(f"""
        s_mov_b64 exec, 1
        ds_write_b64 v13, v[26:27] offset:{LM}
        s_mov_b64 exec, -1
        v_and_b32 v8, 3, v0
        v_lshlrev_b32 v8, 3, v8
        s_waitcnt lgkmcnt(0)
        s_barrier
        ds_read_b32 v26, v8 offset:{LM}
        s_waitcnt lgkmcnt(0)
        v_max_f32 v26, v26, v26 quad_perm:[1,0,3,2] {DP}
        v_max_f32 v26, v26, v26 quad_perm:[2,3,0,1] {DP}
        v_sub_f32 v28, v24, v26
        v_sub_f32 v29, v25, v26
        v_mul_f32 v28, s43, v28
        v_mul_f32 v29, s43, v29
        v_exp_f32 v28, v28
        v_exp_f32 v29, v29
        v_cvt_pk_bf16_f32 v28, v28, v28
        v_cvt_pk_bf16_f32 v29, v29, v29
        """)
        for t in range(8):
            for r in range(4):
                g(f"v_and_b32 v{32+4*t+r}, v{28+t//4}, v{4+r} row_newbcast:{4*(t%4)} {DP}")
        for x in W: g(x); after += 1
        ts(4)
        g(f"""
        s_lshl_b32 s35, s30, 12
        s_lshl_b32 s37, s31, 9
        s_add_u32 s35, s35, s37
        s_add_u32 s35, s35, {OP}
        v_lshl_add_u32 v24, v0, 3, s35
        v_lshrrev_b32 v25, 1, v0
        v_add_u32 v25, s34, v25
        v_and_b32 v26, 31, v0
        v_lshrrev_b32 v27, 5, v0
        v_lshlrev_b32 v27, 10, v27
        v_lshl_add_u32 v26, v26, 4, v27
        """)
        pre(role)
        for t in range(8):
            g(f"s_waitcnt vmcnt({7-t+after})")
            g(f"{MF} v[184:187], v[{64+4*t}:{67+4*t}], v[{32+4*t}:{35+4*t}], {'0' if t == 0 else 'v[184:187]'}")
            if inpv and 3 <= t < 7: g(inpv[t - 3]); after += 1
        ts(9)
        g(f"""
        s_mov_b64 exec, s[40:41]
        s_cmp_lg_u32 s38, 0
        ds_write_b128 v14, v[184:187] offset:{LO}
        s_mov_b64 exec, -1
        s_waitcnt lgkmcnt(0)
        s_barrier
        s_cbranch_scc1 L_nopub_{role}
        ds_read_b128 v[32:35], v26 offset:{LO}
        ds_read_b128 v[36:39], v26 offset:{LO+512}
        s_waitcnt lgkmcnt(0)
        v_pk_add_f32 v[32:33], v[32:33], v[36:37]
        v_pk_add_f32 v[34:35], v[34:35], v[38:39]
        v_permlane32_swap_b32 v32, v34
        v_permlane32_swap_b32 v33, v35
        v_pk_add_f32 v[32:33], v[32:33], v[34:35]
        v_bfi_b32 v28, s61, v25, v32
        v_bfi_b32 v29, s61, v25, v33
        v_mov_b32 v30, v28 quad_perm:[1,1,3,3] {DP}
        v_mov_b32 v31, v29 quad_perm:[1,1,3,3] {DP}
        s_mov_b64 exec, s[62:63]
        """)
        if O['ofast']:
            g("global_store_dwordx4 v24, v[28:31], s[28:29]")
            g(f"v_add_u32 v24, {SLOW}, v24")
        if role != 'wo' or not O['ofast']:
            g("global_store_dwordx4 v24, v[28:31], s[28:29] sc1")
        g(f"""
        s_mov_b64 exec, -1
        L_nopub_{role}:
        """)
        ts(5)
        g("s_barrier")
        if late:
            for x in late: g(x)

    def pre(role):
        if role == 'wo':
            g(f"""
            s_lshl_b32 s35, s54, 7
            s_add_u32 s35, s35, {ML}
            v_lshrrev_b32 v8, 3, v0
            v_lshl_add_u32 v160, v8, 4, s35
            s_lshl_b32 s35, s54, 12
            s_and_b32 s37, s38, 1
            s_lshl_b32 s37, s37, 8
            s_add_u32 s35, s35, s37
            s_add_u32 s35, s35, {OP}
            v_lshl_add_u32 v8, v8, 9, s35
            v_and_b32 v9, 7, v0
            v_lshl_add_u32 v161, v9, 4, v8
            s_lshr_b32 s37, s37, 4
            s_add_u32 s37, s37, s34
            v_add_u32 v9, s37, v9
            v_and_b32 v162, s61, v9
            v_add_u32 v9, 8, v9
            v_and_b32 v163, s61, v9
            v_lshrrev_b32 v8, 1, v1
            s_lshl_b32 s35, s38, 9
            v_lshl_add_u32 v8, v8, 8, s35
            v_and_b32 v9, 1, v1
            v_lshl_add_u32 v9, v9, 3, v3
            v_lshl_add_u32 v164, v9, 4, v8
            v_lshlrev_b32 v8, 9, v1
            v_lshl_add_u32 v165, v2, 4, v8
            s_lshl_b32 s35, s55, 12
            s_lshl_b32 s37, s56, 8
            s_add_u32 s35, s35, s37
            s_add_u32 s35, s35, {YP}
            v_lshl_add_u32 v166, v0, 2, s35
            v_lshrrev_b32 v8, 2, v0
            v_add_u32 v167, s34, v8
            s_mov_b32 s58, 0x0f0f0f0f
            s_mov_b32 s59, 0xf0f0f0f0
            s_cmp_eq_u32 s38, 0
            s_cselect_b64 s[50:51], s[62:63], 0
            s_mov_b32 s52, 0
            """)
        if role == 'ffn':
            g(f"""
            s_lshl_b32 s35, s38, 13
            s_add_u32 s35, s35, {YP+4096}
            v_add_u32 v160, s35, v10
            v_add_u32 v8, s34, v2
            v_and_b32 v161, s61, v8
            s_lshl_b32 s35, s38, 9
            v_lshl_add_u32 v162, v0, 3, s35
            v_lshlrev_b32 v163, 5, v0
            v_or_b32 v164, v4, v6
            v_or_b32 v165, v5, v7
            v_lshl_add_u32 v8, v1, 7, s35
            v_and_b32 v9, 3, v0
            v_lshl_add_u32 v166, v9, 4, v8
            s_mul_i32 s35, s38, {4*6144}
            s_lshl_b32 s37, s39, 7
            s_add_u32 s35, s35, s37
            s_add_u32 s35, s35, {FP}
            v_mul_u32_u24 v8, 6144, v1
            v_lshl_add_u32 v8, v3, 4, v8
            v_add_u32 v167, s35, v8
            v_add_u32 v168, s34, v3
            v_mov_b32 v169, 0
            s_mov_b32 s58, 0x00f0000f
            s_mov_b32 s59, 0xf0000f00
            """)
            if O['fnew']: g("""
            s_load_dword s54, s[4:5], 0
            s_mov_b64 s[48:49], -1
            v_lshrrev_b32 v8, 5, v0
            s_lshl_b32 s35, s38, 3
            v_lshl_add_u32 v162, v8, 2, s35
            """)

    attention('pl')
    cur[0] = 'red'
    g(f"""
    s_sub_u32 s39, s2, 192
    s_cmp_lt_u32 s39, 32
    s_cselect_b32 s35, 1, 99
    s_cmp_eq_u32 s38, s35
    s_cbranch_scc0 {'L_rdry' if O['dry'] & 2 else 'L_fin'}
    """)
    if O['dry'] & 2: tail.append("""
    L_rdry:
    s_add_u32 s35, s35, 1
    s_cmp_eq_u32 s38, s35
    s_cbranch_scc0 L_fin
    v_mov_b32 v16, 0
    s_mov_b64 s[46:47], 0
    s_mov_b32 s39, 1
    s_mov_b64 exec, 0
    s_branch {RD}
    """.replace("{RD}", "L_rp_b" if O['rpp'] else "L_rp_c"))
    g(f"""
    s_lshr_b32 s54, s39, 1
    s_and_b32 s55, s39, 1
    v_and_b32 v9, 3, v0
    s_lshl_b32 s35, s54, 5
    s_lshl_b32 s37, s55, 2
    s_add_u32 s35, s35, s37
    v_lshl_add_u32 v8, v1, 3, v9
    v_add_u32 v8, s35, v8
    v_lshlrev_b32 v16, 1, v8
    v_mov_b32 v20, 0
    v_mov_b32 v21, 0
    global_load_short_d16_hi v20, v16, s[4:5]
    global_load_short_d16_hi v21, v16, s[22:23]
    s_lshr_b32 s35, s54, 1
    s_lshl_b32 s35, s35, 12
    s_and_b32 s37, s39, 3
    s_lshl_b32 s57, s37, 4
    s_add_u32 s35, s35, s57
    s_add_u32 s35, s35, {YP}
    v_lshrrev_b32 v8, 2, v2
    v_lshl_add_u32 v8, v8, 8, s35
    v_lshl_add_u32 v8, v1, 6, v8
    v_lshl_add_u32 v17, v9, 2, v8
    s_add_u32 s37, s37, s34
    v_lshl_add_u32 v8, v1, 2, s37
    v_and_b32 v18, s61, v8
    s_mul_i32 s35, s54, 6144
    s_lshl_b32 s37, s55, 6
    s_add_u32 s35, s35, s37
    s_add_u32 s35, s35, {FP+2048}
    v_lshrrev_b32 v8, 2, v0
    v_lshl_add_u32 v8, v8, 7, s35
    v_lshl_add_u32 v19, v9, 4, v8
    s_lshl_b32 s37, s55, 2
    s_add_u32 s37, s37, s34
    v_add_u32 v8, s37, v9
    v_and_b32 v22, s61, v8
    s_mov_b32 s58, -1
    s_mov_b32 s59, 0xfff
    """)
    poll("\n".join(f"global_load_dword v{32+u}, v17, s[28:29] offset:{1024*u} sc1" for u in range(4)),
         chk([(32 + i, 18) for i in range(4)], 8), "rh")
    g(f"""
    v_add_f32 v32, v32, v33
    v_add_f32 v34, v34, v35
    v_add_f32 v32, v32, v34
    v_add_f32 v32, v32, v32 row_ror:4 {DP}
    v_add_f32 v32, v32, v32 row_ror:8 {DP}
    v_cvt_pk_bf16_f32 v32, v32, v32
    v_lshlrev_b32 v32, 16, v32
    v_add_f32 v20, v20, v32
    v_cvt_pk_bf16_f32 v20, v20, v20
    v_and_b32 v20, s42, v20
    """)
    ts(6)
    def fld(a): return f"""
    v_mov_b32 v{a+8}, v22
    v_mov_b32 v{a+9}, v22
    v_mov_b32 v{a+10}, v22
    v_mov_b32 v{a+11}, v22
    global_load_dwordx4 v[{a}:{a+3}], v19, s[28:29] offset:-2048 sc1
    global_load_dwordx4 v[{a+4}:{a+7}], v19, s[28:29] sc1
    s_mov_b64 exec, s[58:59]
    global_load_dwordx4 v[{a+8}:{a+11}], v19, s[28:29] offset:2048 sc1
    s_mov_b64 exec, -1
    """
    def fck(a): return chk([(a + i, 22) for i in range(12)], 8)
    def fsum(a): return f"""
    v_pk_add_f32 v[32:33], v[{a}:{a+1}], v[{a+4}:{a+5}]
    v_pk_add_f32 v[34:35], v[{a+2}:{a+3}], v[{a+6}:{a+7}]
    v_pk_add_f32 v[32:33], v[32:33], v[{a+8}:{a+9}]
    v_pk_add_f32 v[34:35], v[34:35], v[{a+10}:{a+11}]
    """
    if O['rpp']:
        ppoll("rp", fld(48), fck(48), fld(64), fck(64), 3, O['rgap'], O['spin'], "L_rp_a")
        g("L_rp_a:")
        tail.append("L_rp_b:\n" + fsum(64) + "\ns_branch L_rp_c")
    elif not O['rgrp']:
        poll("""
        v_mov_b32 v40, v22
        v_mov_b32 v41, v22
        v_mov_b32 v42, v22
        v_mov_b32 v43, v22
        global_load_dwordx4 v[32:35], v19, s[28:29] offset:-2048 sc1
        global_load_dwordx4 v[36:39], v19, s[28:29] sc1
        s_mov_b64 exec, s[58:59]
        global_load_dwordx4 v[40:43], v19, s[28:29] offset:2048 sc1
        s_mov_b64 exec, -1
        """, chk([(32 + i, 22) for i in range(12)], 8), "rf")
    else:
        FL = ["global_load_dwordx4 v[32:35], v19, s[28:29] offset:-2048 sc1", "global_load_dwordx4 v[36:39], v19, s[28:29] sc1",
              "v_mov_b32 v40, v22\nv_mov_b32 v41, v22\nv_mov_b32 v42, v22\nv_mov_b32 v43, v22\ns_mov_b64 exec, s[58:59]\n"
              "global_load_dwordx4 v[40:43], v19, s[28:29] offset:2048 sc1\ns_mov_b64 exec, -1"]
        if O['rdel']: g(f"s_sleep {O['rdel']}")
        for x in FL: g(x)
        g(f"s_mov_b32 s36, {O['spin']}\ns_mov_b32 s57, 7\nL_fw:\ns_waitcnt vmcnt(0)")
        for k in range(3):
            g(f"s_bitcmp1_b32 s57, {k}\ns_cbranch_scc0 L_fs{k}")
            g(chk([(32 + 4 * k + i, 22) for i in range(4)], 8))
            g(f"s_cbranch_vccnz L_ff{k}\ns_bitset0_b32 s57, {k}\nL_fs{k}:")
            tail.append(f"L_ff{k}:\n{FL[k]}\ns_branch L_fs{k}")
        g("s_cmp_eq_u32 s57, 0\ns_cbranch_scc0 L_fr\nL_fd:")
        tail.append("L_fr:\ns_sub_u32 s36, s36, 1\ns_cbranch_scc0 L_fw\ns_waitcnt vmcnt(0)\ns_branch L_fd")
    g(fsum(48 if O['rpp'] else 32))
    g("L_rp_c:")
    ts(7)
    rs4(32)
    g(f"""
    v_add_f32 v32, v32, v32 row_ror:4 {DP}
    v_add_f32 v32, v32, v32 row_ror:8 {DP}
    v_cvt_pk_bf16_f32 v32, v32, v32
    v_lshlrev_b32 v32, 16, v32
    v_add_f32 v32, v32, v21
    v_cvt_pk_bf16_f32 v32, v32, v32
    v_lshlrev_b32 v32, 16, v32
    v_add_f32 v32, v32, v20
    v_cvt_pk_bf16_f32 v32, v32, v32
    s_mov_b64 exec, s[46:47]
    global_store_short v16, v32, s[24:25]
    s_cmp_lg_u32 s39, 0
    s_cbranch_scc1 L_fin
    s_mov_b64 exec, 1
    v_mov_b32 v8, 0
    v_mov_b32 v9, s34
    global_store_dword v8, v9, s[28:29]
    """)
    if O['pad']:
        if O['xchk']: g("""
        s_getreg_b32 s98, hwreg(HW_REG_XCC_ID, 0, 4)
        s_cmp_eq_u32 s98, s32
        s_cbranch_scc1 L_fin
        """)
        g(f"""
        s_memrealtime s[98:99]
        s_waitcnt lgkmcnt(0)
        s_sub_u32 s98, s98, s96
        s_mul_i32 s98, s98, {O['amp']}
        s_add_u32 s96, s96, s98
        s_add_u32 s96, s96, {O['pad']}
        L_pad:
        s_memrealtime s[98:99]
        s_waitcnt lgkmcnt(0)
        s_sub_u32 s98, s98, s96
        s_cmp_lt_i32 s98, 0
        s_cbranch_scc1 L_pad
        """)
    g("s_branch L_fin")
    g("L_att_wo:")
    attention('wo')
    ts(6)
    OA = 48 if O['wpp'] else 32
    def old(a): return f"global_load_dwordx4 v[{a}:{a+3}], v161, s[28:29] sc1\nglobal_load_dwordx4 v[{a+4}:{a+7}], v161, s[28:29] offset:128 sc1"
    def ock(a): return chk([(a + i, 162 + i // 4) for i in range(8)], 8)
    def omul(a): return "\n".join(f"v_pk_mul_f32 v[{32+2*i}:{33+2*i}], v[{a+2*i}:{a+1+2*i}], v[40:41] op_sel_hi:[1,0]" for i in range(4))
    g(f"""
    s_mov_b32 s36, {O['spin']}
    L_wp:
    global_load_dwordx4 v[40:43], v160, s[28:29] sc1
    {old(OA)}
    s_waitcnt vmcnt(2)
    v_mov_b32 v44, v40
    v_xor_b32 v41, s34, v41
    v_xor_b32 v43, s34, v43
    """)
    xrow("v_max_f32", 44, 45, (8,))
    g("""
    v_sub_f32 v40, v40, v44
    v_mul_f32 v40, s43, v40
    v_exp_f32 v40, v40
    v_or_b32 v41, v41, v43
    v_cmp_ne_u32 s[60:61], 0, v41
    v_mul_f32 v44, v40, v42
    """.replace("s[60:61]", "s[48:49]"))
    xrow("v_add_f32", 44, 45, (8,))
    g("""
    v_rcp_f32 v44, v44
    s_waitcnt vmcnt(0)
    """)
    g(ock(OA))
    if not O['wpp']:
        g("""
        v_mul_f32 v40, v40, v44
        s_or_b64 vcc, vcc, s[48:49]
        s_cbranch_vccnz L_wp_r
        L_wp_d:
        """)
    else:
        g(f"""
        v_mul_f32 v40, v40, v44
        s_or_b64 vcc, vcc, s[48:49]
        s_cbranch_vccz L_wp_d
        s_or_b32 s48, s48, s49
        s_or_b32 s48, s48, s52
        s_cbranch_scc1 L_wp_r
        s_mov_b32 s52, 1
        """)
        ppoll("wq", old(48), ock(48), old(56), ock(56), 2, O['wgap'], 12, "L_wp_r")
        g("L_wp_d:")
        tail.append("L_wq_b:\n" + omul(56) + "\ns_branch L_wq_c")
    OSLOW = "s_mov_b64 exec, s[50:51]\nglobal_store_dwordx4 v24, v[28:31], s[28:29] sc1\ns_mov_b64 exec, -1" if O['ofast'] else ""
    tail.append(f"""
    L_wp_r:
    s_sub_u32 s36, s36, 1
    s_cbranch_scc1 L_wp_d
    s_and_b32 s35, s36, 7
    s_cmp_le_u32 s35, 1
    s_cselect_b32 s35, {SLOW if O['ofast'] else 0}, 0
    v_xor_b32 v160, s35, v160
    v_xor_b32 v161, s35, v161
    s_cbranch_scc0 L_wp
    {OSLOW}
    s_branch L_wp
    """)
    if O['ts']: g(f"s_sub_u32 s88, {O['spin']}, s36")
    g(omul(OA))
    g("L_wq_c:")
    ts(7)
    g(f"""
    v_permlane16_swap_b32 v32, v33
    v_permlane16_swap_b32 v34, v35
    v_permlane16_swap_b32 v36, v37
    v_permlane16_swap_b32 v38, v39
    v_add_f32 v32, v32, v33
    v_add_f32 v34, v34, v35
    v_add_f32 v36, v36, v37
    v_add_f32 v38, v38, v39
    v_permlane32_swap_b32 v32, v34
    v_permlane32_swap_b32 v36, v38
    v_add_f32 v32, v32, v34
    v_add_f32 v36, v36, v38
    v_add_f32 v32, v32, v32 row_ror:8 {DP}
    v_add_f32 v36, v36, v36 row_ror:8 {DP}
    v_cvt_pk_bf16_f32 v32, v32, v32
    v_cvt_pk_bf16_f32 v36, v36, v36
    """)
    for k in range(9):
        if k < 8:
            n, t = k // 4, k % 4
            for r in range(4):
                g(f"v_and_b32 v{64+4*k+r}, v{32+4*n}, v{4+r} quad_perm:[{t},{t},{t},{t}] {DP}")
        if k >= 1:
            u = k - 1
            g(f"{MF} v[184:187], v[{96+4*u}:{99+4*u}], v[{64+4*u}:{67+4*u}], {'0' if u == 0 else 'v[184:187]'}")
    g(f"""
    s_mov_b64 exec, s[58:59]
    s_cmp_lg_u32 s38, 0
    ds_write_b128 v164, v[184:187] offset:{LY}
    {OSLOW}
    s_mov_b64 exec, -1
    s_waitcnt lgkmcnt(0)
    s_barrier
    s_cbranch_scc1 L_fin
    ds_read_b128 v[32:35], v165 offset:{LY}
    ds_read_b128 v[36:39], v165 offset:{LY+256}
    s_waitcnt lgkmcnt(0)
    v_pk_add_f32 v[32:33], v[32:33], v[36:37]
    v_pk_add_f32 v[34:35], v[34:35], v[38:39]
    """)
    rs4(32)
    g(f"""
    v_bfi_b32 v32, s61, v167, v32
    s_mov_b32 s62, 0x11111111
    s_mov_b32 s63, 0x11111111
    v_mov_b32 v33, v32 quad_perm:[1,1,1,1] {DP}
    v_mov_b32 v34, v32 quad_perm:[2,2,2,2] {DP}
    v_mov_b32 v35, v32 quad_perm:[3,3,3,3] {DP}
    s_mov_b64 exec, s[62:63]
    global_store_dwordx4 v166, v[32:35], s[28:29] sc1
    s_branch L_fin
    """)
    g("L_att_ffn:")
    attention('ffn')
    def yld(k): return f"global_load_dwordx4 v[{32+4*k}:{35+4*k}], v160, s[28:29] offset:{1024*k-4096} sc1"
    def w1mm(src):
        for k in range(5):
            if k < 4: src(k)
            if k >= 1:
                u = k - 1
                for hl in range(2):
                    a = 96 + 8 * u + 4 * hl; d = 176 + 4 * hl
                    b = 64 + 4 * u if src.per_k else 64
                    g(f"{MF} v[{d}:{d+3}], v[{a}:{a+3}], v[{b}:{b+3}], {'0' if u == 0 else f'v[{d}:{d+3}]'}")
    if O['ygrp'] and O['yfirst']:
        for k in range(8): g(yld(k))
        g(f"s_waitcnt vmcnt({8+11})")
    else:
        if O['ts']:
            ts(11); g("s_waitcnt vmcnt(18)"); ts(13); g("s_waitcnt vmcnt(11)"); ts(14)
        g("s_waitcnt vmcnt(11)" if O['fnew'] and not O['forder'] else "s_waitcnt vmcnt(0)")
    for n in range(2):
        for p in range(2):
            a = 96 + 16 * n + 8 * p
            g(f"v_swap_b32 v{a+2}, v{a+4}")
            g(f"v_swap_b32 v{a+3}, v{a+5}")
    if O['fnew']:
        def ones(k):
            if k == 0:
                for r in range(4): g(f"v_and_b32 v{64+r}, 0x3f803f80, v{164+r%2}")
        ones.per_k = False
        w1mm(ones)
        g(f"""
        s_mov_b64 exec, s[58:59]
        ds_write_b128 v166, v[176:179] offset:{LH}
        ds_write_b128 v166, v[180:183] offset:{LH+64}
        s_mov_b64 exec, -1
        s_waitcnt lgkmcnt(0)
        s_barrier
        ds_read_b128 v[68:71], v10 offset:{LH}
        ds_read_b128 v[72:75], v10 offset:{LH+1024}
        s_lshl_b32 s54, s54, 16
        s_waitcnt lgkmcnt(0)
        v_pk_add_f32 v[68:69], v[68:69], v[72:73]
        v_pk_add_f32 v[70:71], v[70:71], v[74:75]
        """)
        rs4(68)
        g(f"v_add_f32 v23, v68, v68 row_ror:8 {DP}")
    g("s_waitcnt vmcnt(8)" if O['ygrp'] and O['yfirst'] else f"s_waitcnt vmcnt({O['ywait']})")
    ts(6)
    if not O['ygrp']:
        poll("\n".join(yld(k) for k in range(8)), chk([(32 + i, 161) for i in range(32)], 8), "y")
    else:
        if not O['yfirst']:
            for k in range(8): g(yld(k))
        g(f"s_mov_b32 s36, {O['spin']}\ns_mov_b32 s57, 15\nL_yw:\ns_waitcnt vmcnt(0)")
        for k in range(4):
            g(f"s_bitcmp1_b32 s57, {k}\ns_cbranch_scc0 L_ys{k}")
            g(chk([(32 + 4 * k + i, 161) for i in range(4)] + [(48 + 4 * k + i, 161) for i in range(4)], 8))
            g(f"s_cbranch_vccnz L_yf{k}\ns_bitset0_b32 s57, {k}\nL_ys{k}:")
            tail.append(f"L_yf{k}:\n{yld(k)}\n{yld(k+4)}\ns_branch L_ys{k}")
        g("s_cmp_eq_u32 s57, 0\ns_cbranch_scc0 L_yr\nL_yd:")
        tail.append("L_yr:\ns_sub_u32 s36, s36, 1\ns_cbranch_scc0 L_yw\ns_waitcnt vmcnt(0)\ns_branch L_yd")
    ts(7)
    g("L_ftail:")
    for n in range(2):
        a = 32 + 16 * n
        g(f"""
        v_pk_add_f32 v[{a}:{a+1}], v[{a}:{a+1}], v[{a+4}:{a+5}]
        v_pk_add_f32 v[{a+2}:{a+3}], v[{a+2}:{a+3}], v[{a+6}:{a+7}]
        v_pk_add_f32 v[{a+8}:{a+9}], v[{a+8}:{a+9}], v[{a+12}:{a+13}]
        v_pk_add_f32 v[{a+10}:{a+11}], v[{a+10}:{a+11}], v[{a+14}:{a+15}]
        v_pk_add_f32 v[{a}:{a+1}], v[{a}:{a+1}], v[{a+8}:{a+9}]
        v_pk_add_f32 v[{a+2}:{a+3}], v[{a+2}:{a+3}], v[{a+10}:{a+11}]
        """)
    g(f"""
    v_permlane16_swap_b32 v32, v33
    v_permlane16_swap_b32 v34, v35
    v_permlane16_swap_b32 v48, v49
    v_permlane16_swap_b32 v50, v51
    v_add_f32 v32, v32, v33
    v_add_f32 v34, v34, v35
    v_add_f32 v48, v48, v49
    v_add_f32 v50, v50, v51
    v_permlane32_swap_b32 v32, v34
    v_permlane32_swap_b32 v48, v50
    v_add_f32 v32, v32, v34
    v_add_f32 v48, v48, v50
    v_cvt_pk_bf16_f32 v32, v32, v48
    v_and_b32 v33, s42, v32
    v_lshlrev_b32 v32, 16, v32
    v_pk_add_f32 v[20:21], v[20:21], v[32:33]
    """)
    if not O['fnew']:
        g(f"""
        v_cvt_pk_bf16_f32 v20, v20, v21
        v_and_b32 v21, s42, v20
        v_lshlrev_b32 v20, 16, v20
        ds_write_b64 v162, v[20:21] offset:{LH}
        s_waitcnt lgkmcnt(0)
        s_barrier
        ds_read_b32 v40, v169 offset:{LH}
        ds_read_b128 v[32:35], v163 offset:{LH}
        ds_read_b128 v[36:39], v163 offset:{LH+16}
        s_waitcnt lgkmcnt(0)
        """)
        for i in range(4):
            g(f"v_pk_add_f32 v[{32+2*i}:{33+2*i}], v[{32+2*i}:{33+2*i}], v[40:41] op_sel_hi:[1,0] neg_lo:[0,1] neg_hi:[0,1]")
        g(f"""
        v_pk_add_f32 v[42:43], v[32:33], v[34:35]
        v_pk_mul_f32 v[44:45], v[32:33], v[32:33]
        v_pk_add_f32 v[42:43], v[42:43], v[36:37]
        v_pk_fma_f32 v[44:45], v[34:35], v[34:35], v[44:45]
        v_pk_add_f32 v[42:43], v[42:43], v[38:39]
        v_pk_fma_f32 v[44:45], v[36:37], v[36:37], v[44:45]
        v_add_f32 v42, v42, v43
        v_pk_fma_f32 v[44:45], v[38:39], v[38:39], v[44:45]
        v_add_f32 v44, v44, v45
        v_permlane32_swap_b32 v42, v44
        v_add_f32 v42, v42, v44
        v_add_f32 v42, v42, v42 row_ror:8 {DP}
        v_add_f32 v42, v42, v42 row_ror:4 {DP}
        v_add_f32 v42, v42, v42 row_ror:2 {DP}
        v_add_f32 v42, v42, v42 row_ror:1 {DP}
        v_mov_b32 v43, v42
        v_permlane16_swap_b32 v42, v43
        v_add_f32 v42, v42, v43
        v_mul_f32 v42, 0x3b000000, v42
        v_mov_b32 v43, v42
        v_permlane32_swap_b32 v42, v43
        v_fma_f32 v43, -v42, v42, v43
        v_add_f32 v42, v42, v40
        v_max_f32 v43, 0, v43
        v_cvt_pk_bf16_f32 v42, v42, v43
        v_and_b32 v43, s42, v42
        v_lshlrev_b32 v42, 16, v42
        v_add_f32 v43, 0x3727c5ac, v43
        v_pk_add_f32 v[20:21], v[20:21], v[42:43] op_sel_hi:[1,0] neg_lo:[0,1] neg_hi:[0,1]
        v_cvt_pk_bf16_f32 v43, v43, v43
        v_and_b32 v43, s42, v43
        v_sqrt_f32 v43, v43
        v_cvt_pk_bf16_f32 v20, v20, v21
        v_cvt_pk_bf16_f32 v43, v43, v43
        v_and_b32 v43, s42, v43
        v_rcp_f32 v42, v43
        v_and_b32 v21, s42, v20
        v_lshlrev_b32 v20, 16, v20
        v_pk_mul_f32 v[20:21], v[20:21], v[42:43] op_sel_hi:[1,0]
        v_cvt_pk_bf16_f32 v20, v20, v20
        v_cvt_pk_bf16_f32 v21, v21, v21
        """)
        for k in range(5):
            if k < 4:
                n, p = k // 2, k % 2
                for r in range(4):
                    t = 2 * p + r // 2
                    g(f"v_and_b32 v{64+4*k+r}, v{20+n}, v{164+r%2} quad_perm:[{t},{t},{t},{t}] {DP}")
            if k >= 1:
                u = k - 1
                for hl in range(2):
                    a = 96 + 8 * u + 4 * hl; d = 176 + 4 * hl
                    g(f"{MF} v[{d}:{d+3}], v[{a}:{a+3}], v[{64+4*u}:{67+4*u}], {'0' if u == 0 else f'v[{d}:{d+3}]'}")
        g(f"""
        s_mov_b64 exec, s[58:59]
        ds_write_b128 v166, v[176:179] offset:{LP}
        ds_write_b128 v166, v[180:183] offset:{LP+64}
        s_mov_b64 exec, -1
        s_waitcnt lgkmcnt(0)
        s_barrier
        ds_read_b128 v[32:35], v10 offset:{LP}
        ds_read_b128 v[36:39], v10 offset:{LP+1024}
        s_waitcnt lgkmcnt(0)
        v_pk_add_f32 v[32:33], v[32:33], v[36:37]
        v_pk_add_f32 v[34:35], v[34:35], v[38:39]
        """)
        rs4(32)
        g(f"v_add_f32 v32, v32, v32 row_ror:8 {DP}")
    else:
        g("""
        v_cvt_pk_bf16_f32 v20, v20, v20
        v_cvt_pk_bf16_f32 v21, v21, v21
        """)
        ST = [f"""v_and_b32 v40, s42, v20
        v_and_b32 v41, s42, v21""", f"""v_subrev_f32 v40, s54, v40
        v_subrev_f32 v41, s54, v41
        v_add_f32 v42, v40, v41
        v_mul_f32 v44, v40, v40
        v_fmac_f32 v44, v41, v41""", f"""v_permlane32_swap_b32 v42, v44
        v_add_f32 v42, v42, v44
        v_add_f32 v42, v42, v42 row_ror:8 {DP}""", f"""v_add_f32 v42, v42, v42 row_ror:4 {DP}
        v_add_f32 v42, v42, v42 row_ror:2 {DP}"""]
        def hb(k):
            n, p = k // 2, k % 2
            st = [x.strip() for x in ST[k].split("\n")]
            for r in range(4):
                t = 2 * p + r // 2
                g(f"v_and_b32 v{64+4*k+r}, v{20+n}, v{164+r%2} quad_perm:[{t},{t},{t},{t}] {DP}")
                if k >= 2 and r % 2 == 1 and st: g(st.pop(0))
                if k == 2 and r == 0: g(st.pop(0))
            for x in st: g(x)
        hb.per_k = True
        w1mm(hb)
        g(f"""
        v_add_f32 v42, v42, v42 row_ror:1 {DP}
        v_mov_b32 v43, v42
        v_permlane16_swap_b32 v42, v43
        v_add_f32 v42, v42, v43
        s_mov_b64 exec, s[58:59]
        ds_write_b32 v162, v42 offset:{LM}
        ds_write_b128 v166, v[176:179] offset:{LP}
        ds_write_b128 v166, v[180:183] offset:{LP+64}
        s_mov_b64 exec, s[48:49]
        s_cbranch_execz L_fnb
        s_waitcnt lgkmcnt(0)
        s_barrier
        L_fnb:
        ds_read_b128 v[40:43], v169 offset:{LM}
        ds_read_b128 v[44:47], v169 offset:{LM+16}
        ds_read_b128 v[32:35], v10 offset:{LP}
        ds_read_b128 v[36:39], v10 offset:{LP+1024}
        s_waitcnt lgkmcnt(2)
        v_pk_add_f32 v[40:41], v[40:41], v[42:43]
        v_pk_add_f32 v[44:45], v[44:45], v[46:47]
        v_pk_add_f32 v[40:41], v[40:41], v[44:45]
        v_mul_f32 v40, 0x3b000000, v40
        v_mul_f32 v41, 0x3b000000, v41
        v_fma_f32 v41, -v40, v40, v41
        v_add_f32 v40, s54, v40
        v_max_f32 v41, 0, v41
        v_cvt_pk_bf16_f32 v40, v40, v41
        v_and_b32 v41, s42, v40
        v_add_f32 v41, 0x3727c5ac, v41
        v_cvt_pk_bf16_f32 v41, v41, v41
        v_and_b32 v41, s42, v41
        v_sqrt_f32 v41, v41
        s_waitcnt lgkmcnt(0)
        v_pk_add_f32 v[32:33], v[32:33], v[36:37]
        v_pk_add_f32 v[34:35], v[34:35], v[38:39]
        v_cvt_pk_bf16_f32 v41, v41, v41
        v_lshlrev_b32 v40, 16, v40
        v_permlane16_swap_b32 v32, v33
        v_permlane16_swap_b32 v34, v35
        v_and_b32 v41, s42, v41
        v_add_f32 v32, v32, v33
        v_add_f32 v34, v34, v35
        v_rcp_f32 v41, v41
        v_mul_f32 v40, v40, v23
        v_permlane32_swap_b32 v32, v34
        v_add_f32 v32, v32, v34
        v_add_f32 v32, v32, v32 row_ror:8 {DP}
        v_sub_f32 v32, v32, v40
        v_mul_f32 v32, v32, v41
        """)
    g(f"""
    v_cvt_pk_bf16_f32 v32, v32, v32
    v_lshlrev_b32 v32, 16, v32
    v_add_f32 v32, v32, v22
    v_cvt_pk_bf16_f32 v32, v32, v32
    v_lshlrev_b32 v32, 16, v32
    v_max_f32 v32, 0, v32
    v_mul_f32 v32, v32, v32
    v_cvt_pk_bf16_f32 v32, v32, v32
    """)
    for k in range(5):
        if k < 4:
            for r in range(4):
                g(f"v_and_b32 v{64+4*k+r}, v32, v{4+r} quad_perm:[{k},{k},{k},{k}] {DP}")
        if k >= 1:
            u = k - 1
            for n in range(2):
                a = 128 + 16 * n + 4 * u; d = 176 + 4 * n
                g(f"{MF} v[{d}:{d+3}], v[{a}:{a+3}], v[{64+4*u}:{67+4*u}], {'0' if u == 0 else f'v[{d}:{d+3}]'}")
    for r in range(4): g(f"v_permlane32_swap_b32 v{176+r}, v{180+r}")
    for r in range(4): g(f"v_add_f32 v{176+r}, v{180+r}, v{176+r} row_shl:4 {DP}")
    for r in range(4): g(f"v_bfi_b32 v{176+r}, s61, v168, v{176+r}")
    g("""
    s_mov_b64 exec, s[40:41]
    global_store_dwordx4 v167, v[176:179], s[28:29] sc1
    L_fin:
    """)
    ts(8)
    ts_end()
    g("L_end:\ns_endpgm")
    for t in tail: g(t)
    if O['cpf']: g('L_codeend:')
    body, nn = pad(L)
    ref = open(os.path.join(os.path.dirname(__file__), "..", "cdna_kernels", NAME + ".s.ref")).read().split("\n")
    hdr = [l for l in ref if l.startswith(";") and "@launch" not in l]
    out = hdr + [f"; @launch grid=(256,1,1) block=(320,1,1) lds={LDS}",
                 '.amdgcn_target "amdgcn-amd-amdhsa--gfx950"', ".text", f".globl {NAME}_kernel", ".p2align 8",
                 f".type {NAME}_kernel,@function", f"{NAME}_kernel:"]
    out += [("" if l.endswith(":") else "    ") + l for l in body]
    out += ['.section .rodata,"a"', ".p2align 6", f".amdhsa_kernel {NAME}_kernel",
            "  .amdhsa_next_free_vgpr 192", "  .amdhsa_next_free_sgpr 102", "  .amdhsa_accum_offset 192",
            "  .amdhsa_group_segment_fixed_size 0", "  .amdhsa_kernarg_size 104", "  .amdhsa_user_sgpr_count 2",
            "  .amdhsa_user_sgpr_kernarg_segment_ptr 1", "  .amdhsa_system_sgpr_workgroup_id_x 1",
            "  .amdhsa_float_denorm_mode_32 3", ".end_amdhsa_kernel", ""]
    return "\n".join(out)

if __name__ == "__main__":
    kw = {}
    outp = sys.argv[1]
    for a in sys.argv[2:]:
        k, v = a.split("=")
        kw[k] = int(v) if v.lstrip('-').isdigit() else v
    open(outp, "w").write(gen(**kw))
```
